```python
import torch

def _softmax(x, axis=-1):
    return torch.softmax(x, dim=axis)
def _gelu(x):
    return torch.nn.functional.gelu(x, approximate="tanh")
def _silu(x):
    return torch.nn.functional.silu(x)
def _sigmoid(x):
    return torch.sigmoid(x)
def _layernorm(x, axis=-1, eps=1e-5):
    m = x.mean(dim=axis, keepdim=True)
    v = x.var(dim=axis, keepdim=True, unbiased=False)
    return (x - m) / torch.sqrt(v + eps)
def _scatter_add(tgt, idx, src, axis=0):
    return tgt.clone().index_add_(axis, idx, src)
def _segment_sum(src, seg, n):
    out = torch.zeros((n,) + src.shape[1:], dtype=src.dtype)
    return out.index_add_(0, seg, src)
def _pad(x, pw):
    flat = tuple(v for pair in reversed(pw) for v in pair)
    return torch.nn.functional.pad(x, flat)

kernel_name = 'recurrent_scan__compressed_kv_cla__geglu_ffn__decode'

def setup_inputs():

    _w = (lambda a: (lambda t: t.to(torch.bfloat16) if t.is_floating_point() else t)(torch.as_tensor(a)))
    def _A_setup():
        B, H, Sq, Sk, D, M = 2, 32, 1, 8192, 128, 640
        Dc = 4 * D
        return {
            "x": _w((lambda *s: torch.randn(*s, dtype=torch.bfloat16) * 0.05)(B, Sq, M)),
            "c_kv": _w((lambda *s: torch.randn(*s, dtype=torch.bfloat16) * 0.8)(B, Sk, Dc)),
            "w_q": _w((lambda *s: torch.randn(*s, dtype=torch.bfloat16) * 1.6)(M, H, D) * (M ** -0.5)),
            "w_uk": _w((lambda *s: torch.randn(*s, dtype=torch.bfloat16) * 1.6)(Dc, H, D) * (Dc ** -0.5)),
            "w_uv": _w((lambda *s: torch.randn(*s, dtype=torch.bfloat16) * 0.8)(Dc, H, D) * (Dc ** -0.5)),
            "w_o": _w((lambda *s: torch.randn(*s, dtype=torch.bfloat16) * 0.8)(H, D, M) * ((H * D) ** -0.5)),
        }
    _A_in = _A_setup()

    def _B_setup():
        B, S, D, F = 2, 1, 640, 1728
        return {
            "x": _w((lambda *s: torch.randn(*s, dtype=torch.bfloat16) * 0.05)(B, S, D)),
            "w_gate": _w((lambda *s: torch.randn(*s, dtype=torch.bfloat16) * 0.2)(D, F)),
            "w_up": _w((lambda *s: torch.randn(*s, dtype=torch.bfloat16) * 0.2)(D, F)),
            "w_down": _w((lambda *s: torch.randn(*s, dtype=torch.bfloat16) * 0.2)(F, D)),
        }
    _B_in = _B_setup()

    return {
        "A_x": _A_in["x"],
        "A_c_kv": _A_in["c_kv"],
        "A_w_q": _A_in["w_q"],
        "A_w_uk": _A_in["w_uk"],
        "A_w_uv": _A_in["w_uv"],
        "A_w_o": _A_in["w_o"],
        "B_x": _B_in["x"],
        "B_w_gate": _B_in["w_gate"],
        "B_w_up": _B_in["w_up"],
        "B_w_down": _B_in["w_down"],
    }

def reference(A_x, A_c_kv, A_w_q, A_w_uk, A_w_uv, A_w_o, B_x, B_w_gate, B_w_up, B_w_down):
    def _A_ref(x, c_kv, w_q, w_uk, w_uv, w_o):
        B, Sq, M = x.shape[0], x.shape[1], x.shape[2]
        Sk = c_kv.shape[1]
        H, D = w_q.shape[1], w_q.shape[2]
        q = torch.einsum("bqm,mhd->bhqd", x, w_q)
        k = torch.einsum("bkc,chd->bhkd", c_kv, w_uk)
        v = torch.einsum("bkc,chd->bhkd", c_kv, w_uv)
        scores = torch.einsum("bhqd,bhkd->bhqk", q, k) * (D ** -0.5)
        off = Sk - Sq
        qi = torch.arange(Sq)[:, None]
        kj = torch.arange(Sk)[None, :]
        cmask = kj <= (qi + off)
        scores = torch.where(cmask[None, None], scores, -1e9)
        p = _softmax(scores, axis=-1)
        ctx = torch.einsum("bhqk,bhkd->bhqd", p, v)
        return torch.einsum("bhqd,hdm->bqm", ctx, w_o)

    def _B_ref(x, w_gate, w_up, w_down):
        return (_gelu(x @ w_gate) * (x @ w_up)) @ w_down

    x = A_x
    xn = _layernorm(x, axis=-1)
    s = _A_ref(xn, A_c_kv, A_w_q, A_w_uk, A_w_uv, A_w_o)
    g = _silu(_B_ref(xn, B_w_gate, B_w_up, B_w_down))
    return x + s * g
```

```python
import re

KNAME = 'recurrent_scan__compressed_kv_cla__geglu_ffn__decode_kernel'

HEADER = '''; Kernarg layout for this problem (104 bytes, ptrs only, base s[0:1]):
;   offset  96: d_ws      268435456 bytes workspace (unspecified values whenever your kernel or launch list starts; a list's later launches find what earlier ones wrote)
'''

SIZES = dict(x=2560, ckv=16777216, wq=5242880, wuk=4194304, wuv=4194304, wo=5242880, bx=2560,
             wg=2211840, wu=2211840, wd=2211840, out=2560, dbg=256, ws=268435456)
KOFF = dict(x=0, ckv=8, wq=16, wuk=24, wuv=32, wo=40, bx=48, wg=56, wu=64, wd=72, out=80, dbg=88, ws=96)


def v(i, n=1):
    return f'v{i}' if n == 1 else f'v[{i}:{i+n-1}]'
def s(i, n=1):
    return f's{i}' if n == 1 else f's[{i}:{i+n-1}]'
def a(i, n=1):
    return f'a{i}' if n == 1 else f'a[{i}:{i+n-1}]'


class K:
    def __init__(self, name, vgpr=256, sgpr=102, accum=None):
        self.name = name
        self.lines = []
        self.vgpr = vgpr
        self.sgpr = sgpr
        self.accum = accum
        self._lab = 0

    def __call__(self, text):
        for ln in text.strip('\n').split('\n'):
            self.lines.append('    ' + ln.strip())

    def label(self, name):
        self.lines.append(f'{name}:')

    def newlabel(self, stem='L'):
        self._lab += 1
        return f'{stem}_{self.name[:12]}_{self._lab}'

    def c(self, text):
        self.lines.append('    ; ' + text)

    def nop(self, n):
        while n > 0:
            m = min(n, 16)
            self(f's_nop {m-1}')
            n -= m

    def srd(self, d, base, size):
        if d != base:
            self(f's_mov_b32 s{d}, s{base}')
            self(f's_mov_b32 s{d+1}, s{base+1}')
        self(f's_mov_b32 s{d+2}, {size}')
        self(f's_mov_b32 s{d+3}, 0x00020000')

    def text(self):
        accum = self.accum if self.accum is not None else min(256, (self.vgpr + 3) // 4 * 4)
        body = '\n'.join(self.lines)
        code = f'''.globl {self.name}
.p2align 8
.type {self.name},@function
{self.name}:
{body}
'''
        kd = f'''.p2align 6
.amdhsa_kernel {self.name}
  .amdhsa_next_free_vgpr {self.vgpr}
  .amdhsa_next_free_sgpr {self.sgpr}
  .amdhsa_accum_offset {accum}
  .amdhsa_group_segment_fixed_size 0
  .amdhsa_kernarg_size 104
  .amdhsa_user_sgpr_count 2
  .amdhsa_user_sgpr_kernarg_segment_ptr 1
  .amdhsa_system_sgpr_workgroup_id_x 1
  .amdhsa_float_denorm_mode_32 3
.end_amdhsa_kernel
'''
        return code, kd


def module(kernels, launches, comment=''):
    out = HEADER
    for ln in comment.strip('\n').split('\n') if comment else []:
        out += '; ' + ln + '\n'
    if len(launches) == 1 and launches[0][0] == KNAME:
        _, g, b, lds = launches[0]
        out += f'; @launch grid=({g},1,1) block=({b},1,1) lds={lds}\n'
    else:
        for n, g, b, lds in launches:
            out += f'; @launch kernel={n} grid=({g},1,1) block=({b},1,1) lds={lds}\n'
    out += '.amdgcn_target "amdgcn-amd-amdhsa--gfx950"\n.text\n'
    kds = ''
    for k in kernels:
        code, kd = k.text()
        out += code
        kds += kd
    out += '.section .rodata,"a"\n' + kds
    return out


_RE_REG = re.compile(r'^(-|abs\(|\|)?([vsa])(?:(\d+)|\[(\d+):(\d+)\])\)?\|?$')

def _regs(tok):
    tok = tok.strip()
    if tok in ('vcc',): return {('s', 106), ('s', 107)}
    if tok == 'vcc_lo': return {('s', 106)}
    if tok == 'vcc_hi': return {('s', 107)}
    if tok == 'exec': return {('s', 126), ('s', 127)}
    if tok == 'm0': return {('s', 124)}
    m = _RE_REG.match(tok)
    if not m: return set()
    f = m.group(2)
    if m.group(3) is not None: return {(f, int(m.group(3)))}
    return {(f, i) for i in range(int(m.group(4)), int(m.group(5)) + 1)}

_TRANS = ('v_exp_', 'v_log_', 'v_rcp_', 'v_rsq_', 'v_sqrt_', 'v_sin_', 'v_cos_')

class _I:
    def __init__(self, line):
        self.line = line
        t = line.split(';')[0].strip()
        self.mn = t.split()[0] if t else ''
        rest = t[len(self.mn):].strip()
        ops, cur, d = [], '', 0
        for ch in rest:
            if ch == '[': d += 1
            if ch == ']': d -= 1
            if ch == ',' and d == 0:
                ops.append(cur.strip()); cur = ''
            else: cur += ch
        if cur.strip(): ops.append(cur.strip())
        mods = []
        if ops:
            parts = ops[-1].split()
            ops[-1] = parts[0]; mods = parts[1:]
        self.ops, self.mods = ops, mods
        mn = self.mn
        self.mfma = mn.startswith('v_mfma')
        self.valu = mn.startswith('v_') and not self.mfma
        self.vmem = mn.startswith(('buffer_', 'global_'))
        self.ds = mn.startswith('ds_')
        self.salu = mn.startswith('s_')
        self.trans = mn.startswith(_TRANS)
        self.dpp = '_dpp' in mn
        self.perml = mn.startswith('v_permlane')
        self.rdlane = mn.startswith(('v_readlane', 'v_readfirstlane'))
        self.dot = mn.startswith('v_dot')
        R = [_regs(o) for o in ops]
        W = set(); U = set()
        if self.valu or self.mfma:
            if mn.startswith('v_nop'): pass
            elif self.perml or mn.startswith('v_swap'):
                W = R[0] | R[1]; U = R[0] | R[1]
            elif mn.startswith(('v_add_co', 'v_sub_co', 'v_addc_co', 'v_subb_co', 'v_subrev_co', 'v_div_scale', 'v_mad_u64')):
                W = R[0] | R[1]; U = set().union(*R[2:])
            else:
                W = set(R[0]); U = set().union(*R[1:]) if len(R) > 1 else set()
                if mn.startswith(('v_fmac', 'v_dot2c', 'v_writelane')) or self.dpp or 'sdwa' in mn: U |= R[0]
                if mn.startswith('v_cmpx'): W |= _regs('exec')
        elif self.ds:
            if 'read' in mn or 'rtn' in mn or 'permute' in mn or 'swizzle' in mn:
                W = set(R[0]); U = set().union(*R[1:])
            else: U = set().union(*R)
        elif self.vmem:
            if 'load' in mn and 'lds' not in mods and 'load_lds' not in mn:
                W = set(R[0]); U = set().union(*R[1:])
            else: U = set().union(*R) if R else set()
        elif self.salu:
            if mn.startswith(('s_cmp', 's_waitcnt', 's_nop', 's_branch', 's_cbranch', 's_barrier', 's_endpgm', 's_setprio', 's_sleep', 's_bitcmp')):
                U = set().union(*R) if R else set()
            elif R:
                W = set(R[0]); U = set().union(*R[1:]) if len(R) > 1 else set()
                if 'saveexec' in mn: W |= _regs('exec')
        self.W, self.U, self.R = W, U, R
        self.lds_dma = self.vmem and ('lds' in mods or 'load_lds' in mn)
        self.widestore = self.vmem and 'store' in mn and ('x3' in mn or 'x4' in mn)
        if self.mfma:
            self.passes = 8 if '32x32' in mn else 4
        if mn == 's_nop': self.states = int(ops[0], 0) + 1
        else: self.states = 1

def _need(p, c):
    n = 0
    vW = {r for r in p.W if r[0] in 'va'}
    sW = {r for r in p.W if r[0] == 's'}
    if p.valu:
        if c.mfma and (vW & c.U): n = max(n, 2)
        if c.rdlane and (vW & c.U): n = max(n, 1)
        if c.dpp and (vW & c.U): n = max(n, 2)
        if c.perml and (vW & c.U): n = max(n, 2)
        if p.trans and c.valu and not c.trans and (vW & c.U): n = max(n, 1)
        if p.trans and (c.vmem or c.ds) and (vW & c.U): n = max(n, 1)
        if 'sdwa' in p.mn and c.valu and (vW & (c.U | c.W)): n = max(n, 1)
        if p.dot and (c.valu or c.mfma or c.vmem or c.ds) and (vW & (c.U | c.W)) and not (c.mn == p.mn and not (vW & set().union(*c.R[1:3]))): n = max(n, 3)
        if sW:
            if c.vmem and (sW & c.U): n = max(n, 5)
            if c.valu and (sW & c.U):
                n = max(n, 4 if c.mn.startswith(('v_readlane', 'v_writelane')) else 2)
            if c.valu and ('s', 106) in sW and c.mn.startswith('v_div_fmas'): n = max(n, 4)
            if ('s', 126) in sW:
                if c.dpp: n = max(n, 5)
                if c.mfma or c.rdlane or c.perml: n = max(n, 4)
    if p.mfma:
        big = {4: 8, 8: 12}[p.passes]
        if c.mfma:
            ab = c.R[1] | c.R[2]
            if vW & ab: n = max(n, big)
            cc = c.R[3] if len(c.R) > 3 else set()
            if vW & cc:
                if not (cc == vW and c.passes == p.passes): n = max(n, big - 2)
            elif vW & c.W: n = max(n, big - 2)
        elif (c.valu or c.vmem or c.ds) and (vW & (c.U | c.W)): n = max(n, big)
        srcc = p.R[3] if len(p.R) > 3 else set()
        if c.valu and (srcc & c.W): n = max(n, {4: 3, 8: 7}[p.passes])
    if p.salu and ('s', 124) in sW and c.lds_dma: n = max(n, 1)
    if p.widestore:
        data = p.R[0] if p.mn.startswith('buffer') else p.R[1]
        if data & c.W: n = max(n, 2 if c.valu or c.mfma else 1)
    return n

def fix_hazards(lines, window=24):
    out = []
    hist = []
    nins = 0
    for ln in lines:
        t = ln.split(';')[0].strip()
        if not t or t.endswith(':') or t.startswith('.'):
            out.append(ln); continue
        c = _I(ln)
        dist = 0; pad = 0
        for p in reversed(hist[-window:]):
            need = _need(p, c)
            if need > dist: pad = max(pad, need - dist)
            dist += p.states
            if dist >= 20: break
        if pad:
            nop = _I(f'    s_nop {pad-1}')
            out.append(nop.line); hist.append(nop); nins += 1
        out.append(ln); hist.append(c)
        if c.mn in ('s_branch', 's_endpgm'):
            hist = []
    return out
```

```python
import sys, math
sys.path.insert(0, 'gen')
from asm import *

EPOCH = 0
X1  = 0x010000
X2  = 0x060000
XF  = 0x080000
X3S = 0x0C0000
X4  = 0x0D0000
X5S = 0x110000
X5Y = 0x160000
X3  = 0x200000
STAMP = 0x700000
WS_SIZE = 0x800000

RS = 1056
PL = 0
MX = PL + 4096
ACT = MX + 256
OH = ACT + 1024
QL = 6144
CKV = QL + 16 * RS
assert CKV % 256 == 0 and CKV + 128 * RS <= 160 * 1024
LDS_BYTES = 160 * 1024

PTR = dict(x=4, ckv=6, wq=8, wuk=10, wuv=12, wo=14, bx=16, wg=18, wu=20, wd=22, out=24, dbg=26, ws=28)
sN, sH, sJ, sP, sG2, sB, sS = 30, 31, 32, 33, 34, 35, 36
SWS, SGEN, SX = 40, 44, 48
sT = 52
sMHI = 60
sSELLO, sSELHI, sMFF, sMHI16, sCNT = 62, 63, 64, 65, 66
sSTAMP = 70
SPIN = 1 << 18

LOG2E = 1.4426950408889634
def f32(x):
    import struct
    return '0x%08x' % struct.unpack('<I', struct.pack('<f', x))[0]

DPP = 'row_mask:0xf bank_mask:0xf'

class Gen:
    def __init__(self, stamps=False, nt='nt', depth=9, ntckv='nt'):
        self.k = K(KNAME, vgpr=256)
        self.stamps = stamps
        self.nt = nt
        self.ntckv = ntckv
        self.depth = depth

    def stamp(self, i):
        if self.stamps:
            self.k(f's_memrealtime s[{sSTAMP+2*i}:{sSTAMP+2*i+1}]')
            self.k('s_waitcnt lgkmcnt(0)')

    def end(self):
        k = self.k
        if self.stamps:
            self.stamp(15)
            k('s_mov_b64 exec, 1')
            k(f's_lshl_b32 s52, s2, 3')
            k(f's_add_u32 s52, s52, s3')
            k(f's_lshl_b32 s52, s52, 6')
            k(f's_add_u32 s52, s52, {STAMP}')
            k('v_mov_b32 v1, 0')
            for q in range(4):
                for e in range(4):
                    k(f'v_mov_b32 v{4+e}, s{sSTAMP+2*(4*q+e)}')
                k(f'buffer_store_dwordx4 v[4:7], v1, s[{SWS}:{SWS+3}], s52 offen offset:{16*q}')
        k('s_endpgm')

    def poll(self, loads, check):
        k = self.k
        lp, ld = k.newlabel('Lp'), k.newlabel('Ld')
        k(f's_mov_b32 s{sCNT}, {SPIN}')
        k.label(lp)
        loads()
        k('s_waitcnt vmcnt(0)')
        check()
        k('s_and_b64 vcc, exec, vcc')
        k(f's_cbranch_scc0 {ld}')
        k(f's_sub_u32 s{sCNT}, s{sCNT}, 1')
        k(f's_cbranch_scc0 {lp}')
        k.label(ld)

    def tagcheck(self, regs, acc, mask):
        k = self.k
        k(f'v_xor_b32 v{acc}, s{sN}, v{regs[0]}')
        for r in regs[1:]:
            k(f'v_bitop3_b32 v{acc}, v{acc}, v{r}, s{sN} bitop3:0xf6')
        k(f'v_and_b32 v{acc}, {mask}, v{acc}')
        k(f'v_cmp_ne_u32 vcc, 0, v{acc}')

    def gather8(self, vaddr, sbase, D, acc):
        k = self.k
        k(f's_add_u32 s{sT+7}, s{sbase}, 4096')
        def loads():
            for p in range(8):
                k(f'buffer_load_dwordx4 v[{D+4*p}:{D+4*p+3}], v{vaddr}, s[{SWS}:{SWS+3}], s{sbase if p < 4 else sT+7} offen offset:{(p&3)*1024} sc1')
        self.poll(loads, lambda: self.tagcheck(list(range(D, D + 32)), acc, 0xff))
        for st in (16, 8, 4):
            for i in range(0, st, 2):
                k(f'v_pk_add_f32 v[{D+i}:{D+i+1}], v[{D+i}:{D+i+1}], v[{D+st+i}:{D+st+i+1}]')

    def perm8(self, W, B, nrows=8):
        k = self.k
        h = nrows // 2
        for t in range(8):
            for n2 in range(h):
                k(f'v_perm_b32 v{B+t*h+n2}, v{W+(2*n2+1)*4+(t>>1)}, v{W+(2*n2)*4+(t>>1)}, s{sSELHI if t&1 else sSELLO}')

    def publish(self, D, O, vT, vaddr, soff, nsum=1):
        k = self.k
        if nsum == 2:
            for t in range(8):
                k(f'v_add_f32 v{D+4*t}, v{D+4*t}, v{D+4*t+1}')
        for t in range(4):
            k(f'v_cndmask_b32 v{O+t}, v{D+4*t}, v{D+4*(t+4)}, s[{sMHI}:{sMHI+1}]')
        for t in range(4):
            k(f'v_and_or_b32 v{O+t}, v{O+t}, s{sMFF}, v{vT}')
        k(f'buffer_store_dwordx4 v[{O}:{O+3}], v{vaddr}, s[{SWS}:{SWS+3}], s{soff} offen sc1')

    def red32(self, r, t, op='v_add_f32'):
        k = self.k
        k(f'{op}_dpp v{r}, v{r}, v{r} quad_perm:[1,0,3,2] {DPP}')
        k(f'{op}_dpp v{r}, v{r}, v{r} quad_perm:[2,3,0,1] {DPP}')
        k(f'{op}_dpp v{r}, v{r}, v{r} row_ror:8 {DPP}')
        self.swapred(r, t, op)

    def swapred(self, r, t, op):
        k = self.k
        for sw in ('v_permlane16_swap_b32', 'v_permlane32_swap_b32'):
            k(f'v_mov_b32 v{t}, v{r}')
            k(f'{sw} v{t}, v{r}')
            k(f'{op} v{r}, v{r}, v{t}')

    def red64(self, r, t, op):
        k = self.k
        k(f'{op}_dpp v{r}, v{r}, v{r} quad_perm:[1,0,3,2] {DPP}')
        k(f'{op}_dpp v{r}, v{r}, v{r} quad_perm:[2,3,0,1] {DPP}')
        k(f'{op}_dpp v{r}, v{r}, v{r} row_ror:4 {DPP}')
        k(f'{op}_dpp v{r}, v{r}, v{r} row_ror:8 {DPP}')
        self.swapred(r, t, op)

    def rbf(self, r):
        k = self.k
        k(f'v_cvt_pk_bf16_f32 v{r}, v{r}, v{r}')
        k(f'v_and_b32 v{r}, s{sMHI16}, v{r}')

    def unpack(self, src, n, dst):
        k = self.k
        for i in range(n):
            k(f'v_lshlrev_b32 v{dst+2*i}, 16, v{src+i}')
            k(f'v_and_b32 v{dst+2*i+1}, s{sMHI16}, v{src+i}')

    def prologue(self):
        k = self.k
        if self.stamps:
            k(f's_memrealtime s[{sSTAMP}:{sSTAMP+1}]')
        k('s_cmp_ge_u32 s2, 256')
        k('s_cbranch_scc1 L_exit')
        k('s_load_dwordx2 s[28:29], s[0:1], 96')
        k('s_load_dwordx16 s[4:19], s[0:1], 0')
        k('s_load_dwordx8 s[20:27], s[0:1], 64')
        k('v_lshrrev_b32 v4, 6, v0')
        k('v_and_b32 v1, 63, v0')
        k('v_readfirstlane_b32 s3, v4')
        k('v_lshlrev_b32 v2, 4, v1')
        k(f's_and_b32 s52, s2, 7')
        k(f's_lshr_b32 s53, s2, 3')
        k(f's_and_b32 s54, s53, 3')
        k(f's_lshl_b32 s54, s54, 3')
        k(f's_add_u32 s{sH}, s54, s52')
        k(f's_lshr_b32 s{sJ}, s53, 2')
        k(f's_and_b32 s{sG2}, s53, 1')
        k(f's_lshr_b32 s54, s53, 1')
        k(f's_lshl_b32 s55, s52, 4')
        k(f's_add_u32 s{sP}, s54, s55')
        k(f's_lshr_b32 s{sB}, s{sP}, 6')
        k(f's_and_b32 s{sS}, s{sP}, 63')
        k(f's_mov_b32 s{sMHI}, 0')
        k(f's_mov_b32 s{sMHI+1}, -1')
        k(f's_mov_b32 s{sSELLO}, 0x05040100')
        k(f's_mov_b32 s{sSELHI}, 0x07060302')
        k(f's_mov_b32 s{sMFF}, 0xffffff00')
        k(f's_mov_b32 s{sMHI16}, 0xffff0000')
        k('s_waitcnt lgkmcnt(0)')
        k(f's_load_dword s{sN}, s[28:29], {EPOCH}')
        k.srd(SWS, PTR['ws'], WS_SIZE)
        k.srd(SX, PTR['x'], SIZES['x'])
        self.stamp(1)

    def nonce(self):
        k = self.k
        k('s_waitcnt lgkmcnt(0)')
        k(f's_add_u32 s{sN}, s{sN}, 1')
        k(f's_and_b32 s52, s{sN}, 0xff')
        k('v_mov_b32 v3, s52')

    def phaseA(self):
        k = self.k
        XS, XO, W, B, D, U = 12, 24, 36, 116, 148, 180
        k('v_and_b32 v4, 3, v1')
        k('v_lshrrev_b32 v5, 3, v1')
        k('v_lshl_add_u32 v4, v5, 2, v4')
        k('v_bfe_u32 v5, v1, 2, 1')
        k('v_mul_u32_u24 v5, 1280, v5')
        k('v_mad_u32_u24 v4, v4, 40, v5')
        k('v_lshrrev_b32 v6, 4, v1')
        k('v_mad_u32_u24 v5, v6, 40, v5')
        k(f's_mul_i32 s52, s{sJ}, 160')
        k(f'buffer_load_dwordx4 v[{XS}:{XS+3}], v4, s[{SX}:{SX+3}], 0 offen')
        k(f'buffer_load_dwordx4 v[{XS+4}:{XS+7}], v4, s[{SX}:{SX+3}], 0 offen offset:16')
        k(f'buffer_load_dwordx2 v[{XS+8}:{XS+9}], v4, s[{SX}:{SX+3}], 0 offen offset:32')
        k(f'buffer_load_dwordx4 v[{XO}:{XO+3}], v5, s[{SX}:{SX+3}], s52 offen')
        k(f'buffer_load_dwordx4 v[{XO+4}:{XO+7}], v5, s[{SX}:{SX+3}], s52 offen offset:16')
        k(f'buffer_load_dwordx2 v[{XO+8}:{XO+9}], v5, s[{SX}:{SX+3}], s52 offen offset:32')
        for n in range(20):
            k(f'global_load_dwordx4 v[{W+4*n}:{W+4*n+3}], v[8:9], off {self.nt}')
            if n < 19:
                k('v_lshl_add_u64 v[8:9], v[8:9], 0, s[56:57]')
        k('s_barrier')
        self.nonce()
        k('s_waitcnt vmcnt(23)')
        self.stamp(2)
        self.unpack(XS, 10, U)
        k(f'v_add_f32 v4, v{U}, v{U+1}')
        for i in range(2, 20):
            k(f'v_add_f32 v4, v4, v{U+i}')
        self.red32(4, 5)
        k(f'v_mul_f32 v4, {f32(1/640)}, v4')
        for i in range(20):
            k(f'v_sub_f32 v{U+i}, v{U+i}, v4')
        k(f'v_mul_f32 v6, v{U}, v{U}')
        for i in range(1, 20):
            k(f'v_fmac_f32 v6, v{U+i}, v{U+i}')
        self.red32(6, 5)
        k(f'v_mul_f32 v6, {f32(1/640)}, v6')
        self.rbf(4)
        self.rbf(6)
        k(f'v_add_f32 v6, {f32(1e-5)}, v6')
        self.rbf(6)
        k('v_sqrt_f32 v6, v6')
        self.rbf(6)
        k('v_rcp_f32 v6, v6')
        k('s_waitcnt vmcnt(20)')
        self.unpack(XO, 10, U)
        for i in range(20):
            k(f'v_sub_f32 v{U+i}, v{U+i}, v4')
        for i in range(10):
            k(f'v_cvt_pk_bf16_f32 v{XO+i}, v{U+2*i}, v{U+2*i+1}')
        self.unpack(XO, 10, U)
        for i in range(20):
            k(f'v_mul_f32 v{U+i}, v{U+i}, v6')
        for i in range(10):
            k(f'v_cvt_pk_bf16_f32 v{XO+i}, v{U+2*i}, v{U+2*i+1}')
        self.stamp(3)
        for st in range(2):
            k(f's_waitcnt vmcnt({12-8*st})')
            Bs = B if st == 0 else U
            self.perm8(W + 32 * st, Bs)
            for t in range(8):
                c = '0' if st == 0 else f'v[{D+4*t}:{D+4*t+3}]'
                k(f'v_mfma_f32_16x16x32_bf16 v[{D+4*t}:{D+4*t+3}], v[{XO+4*st}:{XO+4*st+3}], v[{Bs+4*t}:{Bs+4*t+3}], {c}')
        k('s_waitcnt vmcnt(0)')
        self.stamp(4)
        self.perm8(W + 64, B, 4)
        for t in range(8):
            k(f'v_mfma_f32_16x16x16_bf16 v[{D+4*t}:{D+4*t+3}], v[{XO+8}:{XO+9}], v[{B+2*t}:{B+2*t+1}], v[{D+4*t}:{D+4*t+3}]')
        self.publish(D, 12, 3, 2, 58)
        self.stamp(5)

    def phaseB(self):
        k = self.k
        W, G, D, A = 16, 80, 112, 128
        k('s_barrier')
        k.srd(SGEN, PTR['wuk'], SIZES['wuk'])
        k('v_and_b32 v4, 15, v1')
        k('v_lshlrev_b32 v4, 15, v4')
        k('v_and_b32 v5, 48, v1')
        k('v_add_u32 v4, v4, v5')
        k(f's_lshl_b32 s52, s{sJ}, 19')
        k(f's_lshl_b32 s53, s{sH}, 8')
        k('s_add_u32 s52, s52, s53')
        for ct in range(4):
            for t in range(4):
                r = W + 16 * ct + 4 * t
                k(f'buffer_load_dwordx4 v[{r}:{r+3}], v4, s[{SGEN}:{SGEN+3}], s52 offen offset:{64*t} {self.nt}')
            if ct < 3: k('s_add_u32 s52, s52, 8192')
        for i in range(4): k(f'v_mov_b32 v{8+i}, -1')
        k(f's_lshl_b32 s52, s{sH}, 3')
        k(f's_add_u32 s52, s52, s{sJ}')
        k(f's_lshl_b32 s52, s52, 14')
        k(f's_add_u32 s52, s52, {X3}')
        for i in range(16):
            k(f'buffer_store_dwordx4 v[8:11], v2, s[{SWS}:{SWS+3}], s52 offen offset:{(i&3)*1024} sc1')
            if i & 3 == 3 and i < 15: k('s_add_u32 s52, s52, 4096')
        self.nonce()
        k(f's_lshl_b32 s52, s{sH}, 13')
        k(f's_add_u32 s52, s52, {X1}')
        self.gather8(2, 52, G, 4)
        self.stamp(6)
        self.act_to_lds(G, ACT)
        k('v_bfe_u32 v4, v1, 2, 1')
        k('v_lshlrev_b32 v4, 8, v4')
        k('v_and_b32 v5, 48, v1')
        k('v_add_u32 v4, v4, v5')
        k('s_waitcnt lgkmcnt(0)')
        for t in range(4):
            k(f'ds_read_b128 v[{A+4*t}:{A+4*t+3}], v4 offset:{ACT+64*t}')
        for t in range(4):
            k(f's_waitcnt lgkmcnt({3-t})')
            for ct in range(4):
                c = '0' if t == 0 else f'v[{D+4*ct}:{D+4*ct+3}]'
                r = W + 16 * ct + 4 * t
                k(f'v_mfma_f32_16x16x32_bf16 v[{D+4*ct}:{D+4*ct+3}], v[{A+4*t}:{A+4*t+3}], v[{r}:{r+3}], {c}')
        k('v_and_b32 v4, 15, v1')
        k('v_lshlrev_b32 v4, 4, v4')
        k('v_bfe_u32 v5, v1, 4, 1')
        k('v_lshl_add_u32 v4, v5, 16, v4')
        k(f's_lshl_b32 s52, s{sH}, 11')
        k(f's_lshl_b32 s53, s{sJ}, 8')
        k('s_add_u32 s52, s52, s53')
        k(f's_add_u32 s52, s52, {X2}')
        k(f's_and_b32 s53, s{sN}, 0xffff')
        k('v_mov_b32 v5, s53')
        k(f'v_cvt_pk_bf16_f32 v9, v{D}, v{D+4}')
        k(f'v_cvt_pk_bf16_f32 v11, v{D+8}, v{D+12}')
        k('v_lshl_or_b32 v8, v9, 16, v5')
        k(f'v_and_or_b32 v9, v9, s{sMHI16}, v5')
        k('v_lshl_or_b32 v10, v11, 16, v5')
        k(f'v_and_or_b32 v11, v11, s{sMHI16}, v5')
        k('s_mov_b32 exec_hi, 0')
        k(f'buffer_store_dwordx4 v[8:11], v4, s[{SWS}:{SWS+3}], s52 offen sc1')
        k('s_mov_b64 exec, -1')
        self.stamp(7)

    def act_to_lds(self, G, base):
        k = self.k
        k('v_and_b32 v4, 31, v1')
        k('v_lshlrev_b32 v4, 4, v4')
        k('v_lshrrev_b32 v5, 5, v1')
        k('v_lshl_add_u32 v4, v5, 3, v4')
        k(f'v_cvt_pk_bf16_f32 v{G}, v{G}, v{G+1}')
        k(f'v_cvt_pk_bf16_f32 v{G+1}, v{G+2}, v{G+3}')
        if isinstance(base, int):
            k(f'ds_write_b64 v4, v[{G}:{G+1}] offset:{base}')
        else:
            k(f'v_add_u32 v4, {base}, v4')
            k(f'ds_write_b64 v4, v[{G}:{G+1}]')

    def gatherQ(self):
        k = self.k
        G = 192
        k(f's_lshl_b32 s52, s{sB}, 16')
        k(f's_lshl_b32 s53, s{sG2}, 15')
        k('s_add_u32 s52, s52, s53')
        k('s_sub_u32 s54, s3, 4')
        k('s_lshl_b32 s53, s54, 13')
        k('s_add_u32 s52, s52, s53')
        k(f's_add_u32 s52, s52, {X2}')
        k('s_add_u32 s53, s52, 4096')
        def loads():
            for p in range(8):
                k(f'buffer_load_dwordx4 v[{G+4*p}:{G+4*p+3}], v2, s[{SWS}:{SWS+3}], s{52 if p < 4 else 53} offen offset:{(p&3)*1024} sc1')
        self.poll(loads, lambda: self.tagcheck(list(range(G, G + 32)), 4, 0xffff))
        self.stamp(8)
        k(f's_mul_i32 s54, s54, {4*RS}')
        k(f's_add_u32 s54, s54, {QL}')
        k('v_lshl_add_u32 v4, v1, 3, s54')
        for p in range(8):
            r = G + 4 * p
            k(f'v_perm_b32 v{r}, v{r+1}, v{r}, s{sSELHI}')
            k(f'v_perm_b32 v{r+1}, v{r+3}, v{r+2}, s{sSELHI}')
            k(f'ds_write_b64 v4, v[{r}:{r+1}] offset:{(p>>1)*RS + (p&1)*512}')
        k('s_waitcnt lgkmcnt(0)')

    def gatherO(self):
        k = self.k
        G, ST, U = 192, 200, 208
        k(f's_lshl_b32 s52, s{sH}, 3')
        k(f's_add_u32 s52, s52, s{sJ}')
        k(f's_lshl_b32 s52, s52, 14')
        k('s_lshl_b32 s53, s3, 11')
        k('s_add_u32 s52, s52, s53')
        k(f's_add_u32 s52, s52, {X3}')
        k(f's_and_b32 s53, s{sH}, 16')
        k(f's_and_b32 s54, s{sH}, 7')
        k('s_lshl_b32 s54, s54, 1')
        k('s_add_u32 s53, s53, s54')
        k(f's_bfe_u32 s54, s{sH}, 0x10003')
        k('s_add_u32 s53, s53, s54')
        k('s_lshl_b32 s53, s53, 4')
        k('s_lshr_b32 s54, s3, 2')
        k('s_lshl_b32 s54, s54, 15')
        k('s_add_u32 s53, s53, s54')
        k(f's_add_u32 s53, s53, {X3S}')
        k('v_lshlrev_b32 v5, 9, v1')
        k('s_and_b32 s54, s3, 1')
        k('s_lshl_b32 s54, s54, 7')
        k('v_and_b32 v6, 60, v1')
        k('v_add_u32 v6, s54, v6')
        def loads():
            k(f'buffer_load_dwordx4 v[{ST}:{ST+3}], v5, s[{SWS}:{SWS+3}], s53 offen sc1')
            k(f'buffer_load_dwordx4 v[{G}:{G+3}], v2, s[{SWS}:{SWS+3}], s52 offen sc1')
            k(f'buffer_load_dwordx4 v[{G+4}:{G+7}], v2, s[{SWS}:{SWS+3}], s52 offen offset:1024 sc1')
        def check():
            k(f'v_max3_u32 v4, v{G}, v{G+1}, v{G+2}')
            k(f'v_max3_u32 v4, v4, v{G+3}, v{G+4}')
            k(f'v_max3_u32 v4, v4, v{G+5}, v{G+6}')
            k(f'v_max_u32 v4, v4, v{G+7}')
            k(f'v_xor_b32 v7, s{sN}, v{ST+1}')
            k(f'v_bitop3_b32 v7, v7, v{ST+3}, s{sN} bitop3:0xf6')
            k('v_cmp_eq_u32 s[54:55], -1, v4')
            k('v_cmp_ne_u32 vcc, 0, v7')
            k('s_or_b64 vcc, vcc, s[54:55]')
        self.poll(loads, check)
        self.stamp(11)
        k(f'ds_bpermute_b32 v8, v6, v{ST}')
        k(f'ds_bpermute_b32 v9, v6, v{ST} offset:64')
        k(f'v_mov_b32 v4, v{ST}')
        self.red64(4, 7, 'v_max_f32')
        k(f'v_sub_f32 v{ST}, v{ST}, v4')
        k(f'v_exp_f32 v{ST}, v{ST}')
        self.unpack(G, 8, U)
        k(f'v_mul_f32 v{ST}, v{ST}, v{ST+2}')
        k('s_waitcnt lgkmcnt(0)')
        k('v_sub_f32 v8, v8, v4')
        k('v_sub_f32 v9, v9, v4')
        k('v_exp_f32 v8, v8')
        k('v_exp_f32 v9, v9')
        self.red64(ST, 7, 'v_add_f32')
        for e in range(8):
            k(f'v_mul_f32 v{U+e}, v{U+e}, v8')
        for e in range(8):
            k(f'v_fmac_f32 v{U+e}, v{U+8+e}, v9')
        k(f'v_rcp_f32 v{ST}, v{ST}')
        for e in range(4):
            k(f'v_permlane32_swap_b32 v{U+e}, v{U+4+e}')
        for e in range(4):
            k(f'v_add_f32 v{U+e}, v{U+e}, v{U+4+e}')
        for e in range(2):
            k(f'v_permlane16_swap_b32 v{U+e}, v{U+2+e}')
        for e in range(2):
            k(f'v_add_f32 v{U+e}, v{U+e}, v{U+2+e}')
        for ror in (8, 4):
            for e in range(2):
                k(f'v_add_f32_dpp v{U+e}, v{U+e}, v{U+e} row_ror:{ror} {DPP}')
        for e in range(2):
            k(f'v_mul_f32 v{U+e}, v{U+e}, v{ST}')
        k(f'v_cvt_pk_bf16_f32 v{U}, v{U}, v{U+1}')
        k('s_lshr_b32 s54, s3, 2')
        k('s_lshl_b32 s54, s54, 8')
        k('s_and_b32 s55, s3, 1')
        k('s_lshl_b32 s55, s55, 7')
        k('s_add_u32 s54, s54, s55')
        k('s_and_b32 s55, s3, 2')
        k('s_lshl_b32 s55, s55, 5')
        k('s_add_u32 s54, s54, s55')
        k(f's_add_u32 s54, s54, {OH}')
        k('v_and_b32 v4, 3, v1')
        k('v_lshlrev_b32 v4, 4, v4')
        k('v_lshrrev_b32 v5, 4, v1')
        k('v_lshl_add_u32 v4, v5, 2, v4')
        k('v_add_u32 v4, s54, v4')
        k(f'ds_write_b32 v4, v{U}')
        k('s_waitcnt lgkmcnt(0)')

    def gemv64(self, B, A, D):
        k = self.k
        for st in range(2):
            k(f's_waitcnt lgkmcnt({1-st})')
            for t in range(8):
                c = '0' if st == 0 else f'v[{D+4*t}:{D+4*t+3}]'
                r = B + 32 * st + 4 * t
                k(f'v_mfma_f32_16x16x32_bf16 v[{D+4*t}:{D+4*t+3}], v[{A+4*st}:{A+4*st+3}], v[{r}:{r+3}], {c}')

    def twave(self):
        k = self.k
        Q, CB, S, PF, ACC = 16, 80, 144, 152, 168
        k.srd(SGEN, PTR['ckv'], SIZES['ckv'])
        k(f's_lshl_b32 s52, s{sP}, 17')
        k('s_lshl_b32 s53, s3, 15')
        k('s_add_u32 s52, s52, s53')
        k(f's_mul_i32 s53, s3, {32*RS}')
        k(f's_add_u32 s53, s53, {CKV}')
        k('s_mov_b32 m0, s53')
        k(f'v_mov_b32 v4, 0xff800000')
        k('v_lshlrev_b32 v5, 2, v1')
        k(f'v_add_u32 v5, {MX}, v5')
        k('ds_write_b32 v5, v4')
        k('s_barrier')
        for n in range(32):
            k(f'buffer_load_dwordx4 v2, s[{SGEN}:{SGEN+3}], s52 offen {self.ntckv} lds')
            if n < 31:
                k(f's_add_u32 m0, m0, {RS}')
                k('s_add_u32 s52, s52, 1024')
                if n + 1 >= self.depth:
                    k(f's_waitcnt vmcnt({self.depth-1})')
        self.nonce()
        k('v_and_b32 v4, 15, v1')
        k(f'v_mul_u32_u24 v6, {RS}, v4')
        k('v_and_b32 v5, 48, v1')
        k('v_add_u32 v6, v6, v5')
        k(f'v_add_u32 v7, {QL}, v6')
        k('v_add_u32 v6, s53, v6')
        k(f'v_lshlrev_b32 v8, 2, v4')
        k(f'v_add_u32 v8, {MX}, v8')
        self.stamp(2)
        k('s_barrier')
        self.stamp(3)
        for t in range(16):
            k(f'ds_read_b128 v[{Q+4*t}:{Q+4*t+3}], v7 offset:{64*t}')
            if t == 11: k('s_waitcnt lgkmcnt(4)')
        k('s_waitcnt lgkmcnt(6)')
        for tile in range(2):
            k(f's_waitcnt vmcnt({16 if tile == 0 else 0})')
            if tile == 1: self.stamp(4)
            for t in range(8):
                k(f'ds_read_b128 v[{CB+4*t}:{CB+4*t+3}], v6 offset:{64*t + tile*16*RS}')
            for t in range(16):
                if t < 8:
                    k(f'ds_read_b128 v[{CB+4*(t+8)}:{CB+4*(t+8)+3}], v6 offset:{64*(t+8) + tile*16*RS}')
                    k('s_waitcnt lgkmcnt(8)')
                else:
                    k(f's_waitcnt lgkmcnt({15-t})')
                c = '0' if t == 0 else f'v[{S+4*tile}:{S+4*tile+3}]'
                k(f'v_mfma_f32_16x16x32_bf16 v[{S+4*tile}:{S+4*tile+3}], v[{CB+4*t}:{CB+4*t+3}], v[{Q+4*t}:{Q+4*t+3}], {c}')
        k(f'v_max3_f32 v4, v{S}, v{S+1}, v{S+2}')
        k(f'v_max3_f32 v4, v4, v{S+3}, v{S+4}')
        k(f'v_max3_f32 v4, v4, v{S+5}, v{S+6}')
        k(f'v_max_f32 v4, v4, v{S+7}')
        k('ds_max_f32 v8, v4')
        k('v_lshrrev_b32 v4, 2, v1')
        k(f'v_mul_u32_u24 v9, {RS}, v4')
        k('v_and_b32 v4, 3, v1')
        k('v_lshl_add_u32 v9, v4, 3, v9')
        k('s_lshl_b32 s54, s3, 8')
        k(f's_add_u32 s54, s54, {CKV}')
        k('v_add_u32 v9, s54, v9')
        k(f'v_add_u32 v10, {64*RS}, v9')
        k('s_lshl_b32 s54, s3, 10')
        k(f'v_add_u32 v11, {PL}, v2')
        k('v_add_u32 v12, s54, v11')
        k('s_waitcnt lgkmcnt(0)')
        self.stamp(5)
        k('s_barrier')
        k('ds_read_b32 v4, v8')
        CT = 16
        def trread(i):
            ct, kb = i >> 2, i & 3
            for hf in range(2):
                r = CT + 16 * ct + 4 * kb + 2 * hf
                off = (32 * (kb & 1) + 16 * hf) * RS + 32 * ct
                k(f'ds_read_b64_tr_b16 v[{r}:{r+1}], v{9 if kb < 2 else 10} offset:{off}')
        for i in range(6): trread(i)
        cs = 128 ** -0.5 * LOG2E
        k(f's_mov_b32 s54, {f32(cs)}')
        k('s_waitcnt lgkmcnt(12)')
        k('v_mul_f32 v4, s54, v4')
        for e in range(8):
            k(f'v_fma_f32 v{S+e}, v{S+e}, s54, -v4')
        for e in range(8):
            k(f'v_exp_f32 v{S+e}, v{S+e}')
        for e in range(4):
            k(f'v_cvt_pk_bf16_f32 v{S+e}, v{S+2*e}, v{S+2*e+1}')
        k(f'ds_write_b128 v12, v[{S}:{S+3}]')
        k('s_waitcnt lgkmcnt(0)')
        k('s_barrier')
        self.stamp(6)
        for kb in range(4):
            k(f'ds_read_b128 v[{PF+4*kb}:{PF+4*kb+3}], v11 offset:{1024*kb}')
        AHEAD = 5
        nxt = 6
        for i in range(nxt, nxt + AHEAD): trread(i)
        nxt += AHEAD
        k('v_and_b32 v4, 15, v1')
        k('v_lshlrev_b32 v4, 17, v4')
        k('v_and_b32 v5, 48, v1')
        k('v_add_u32 v4, v4, v5')
        k(f's_lshl_b32 s52, s{sG2}, 21')
        k('s_lshl_b32 s53, s3, 15')
        k('s_add_u32 s52, s52, s53')
        k(f's_lshl_b32 s53, s{sB}, 13')
        k('s_add_u32 s52, s52, s53')
        k(f's_lshl_b32 s53, s{sS}, 6')
        k('s_add_u32 s52, s52, s53')
        k(f's_add_u32 s52, s52, {X3}')
        k('s_add_u32 s53, s52, 4096')
        k('s_add_u32 s54, s52, 16384')
        k('s_add_u32 s55, s53, 16384')
        def emit_out(pp):
            a0, a1 = ACC + 8 * pp, ACC + 8 * pp + 4
            O = 200 + 4 * pp
            k(f'v_cvt_pk_bf16_f32 v{O}, v{a0}, v{a0+1}')
            k(f'v_cvt_pk_bf16_f32 v{O+1}, v{a0+2}, v{a0+3}')
            k(f'v_cvt_pk_bf16_f32 v{O+2}, v{a1}, v{a1+1}')
            k(f'v_cvt_pk_bf16_f32 v{O+3}, v{a1+2}, v{a1+3}')
            k(f'buffer_store_dwordx4 v[{O}:{O+3}], v4, s[{SWS}:{SWS+3}], s{52+pp} offen sc1')
        for i in range(32):
            ct, kb = i >> 2, i & 3
            outstanding_ok = 2 * (nxt - 1 - max(i, 5))
            k(f's_waitcnt lgkmcnt({outstanding_ok})')
            c = '0' if kb == 0 else f'v[{ACC+4*ct}:{ACC+4*ct+3}]'
            r = CT + 16 * ct + 4 * kb
            k(f'v_mfma_f32_16x16x32_bf16 v[{ACC+4*ct}:{ACC+4*ct+3}], v[{r}:{r+3}], v[{PF+4*kb}:{PF+4*kb+3}], {c}')
            if i >= 5 and nxt < 32:
                trread(nxt); nxt += 1
            if i in (11, 19, 27): emit_out((i - 11) // 8)
        emit_out(3)
        self.stamp(7)
        self.gatherO()
        k('s_barrier')
        self.end()

    def load64(self, W, rowoff):
        k = self.k
        for n in range(16):
            k(f's_add_u32 s53, s52, {rowoff(n)}')
            k(f'buffer_load_dwordx4 v[{W+4*n}:{W+4*n+3}], v4, s[{SGEN}:{SGEN+3}], s53 offen {self.nt}')

    def hwaves(self):
        k = self.k
        W, B, D, A = 16, 80, 144, 176
        k('s_cmp_eq_u32 s3, 5')
        k('s_cbranch_scc1 L_w5')
        k('s_cmp_eq_u32 s3, 7')
        k('s_cbranch_scc1 L_w7')
        k('s_cmp_eq_u32 s3, 4')
        k('s_cbranch_scc1 L_w4')
        k(f's_cmp_ge_u32 s{sH}, 27')
        k('s_cbranch_scc1 L_w7')
        k('v_lshrrev_b32 v4, 4, v1')
        k(f's_mov_b32 s52, {20*3456}')
        k('v_mul_lo_u32 v4, v4, s52')
        k('v_and_b32 v5, 7, v1')
        k('v_lshl_add_u32 v4, v5, 4, v4')
        k(f's_mul_i32 s52, s{sJ}, {80*3456}')
        k(f's_lshl_b32 s53, s{sH}, 7')
        k('s_add_u32 s52, s52, s53')
        k('v_add_u32 v4, s52, v4')
        k('v_mov_b32 v5, 0')
        k('s_mov_b32 s54, 0xff00ff00')
        k('s_mov_b32 s55, 0xff00ff00')
        k(f'v_mov_b32 v6, s{PTR["wg"]}')
        k(f'v_mov_b32 v7, s{PTR["wu"]}')
        k('v_cndmask_b32 v8, v6, v7, s[54:55]')
        k(f'v_mov_b32 v6, s{PTR["wg"]+1}')
        k(f'v_mov_b32 v7, s{PTR["wu"]+1}')
        k('v_cndmask_b32 v9, v6, v7, s[54:55]')
        k('v_lshl_add_u64 v[8:9], v[4:5], 0, v[8:9]')
        k('s_mov_b32 s56, 3456')
        k(f's_mov_b32 s58, {XF}')
        k('s_branch L_phA')
        k.label('L_w4')
        k('s_setprio 2')
        k('v_lshrrev_b32 v4, 4, v1')
        k(f's_mov_b32 s52, {20*8192}')
        k('v_mul_lo_u32 v4, v4, s52')
        k('v_and_b32 v5, 15, v1')
        k('v_lshl_add_u32 v4, v5, 4, v4')
        k(f's_mul_i32 s52, s{sJ}, {80*8192}')
        k(f's_lshl_b32 s53, s{sH}, 8')
        k('s_add_u32 s52, s52, s53')
        k('v_add_u32 v4, s52, v4')
        k('v_mov_b32 v5, 0')
        k(f'v_lshl_add_u64 v[8:9], v[4:5], 0, s[{PTR["wq"]}:{PTR["wq"]+1}]')
        k('s_mov_b32 s56, 8192')
        k(f's_mov_b32 s58, {X1}')
        k.label('L_phA')
        k('s_mov_b32 s57, 0')
        k(f's_lshl_b32 s52, s{sH}, 3')
        k(f's_add_u32 s52, s52, s{sJ}')
        k('s_lshl_b32 s52, s52, 10')
        k('s_add_u32 s58, s58, s52')
        self.phaseA()
        k('s_branch L_gq')
        k.label('L_w5')
        self.phaseB()
        k('s_branch L_gq')
        k.label('L_w7')
        k('s_barrier')
        self.nonce()
        k.label('L_gq')
        self.gatherQ()
        k('s_barrier')
        self.stamp(9)
        k('s_cmp_eq_u32 s3, 7')
        k('s_cbranch_scc1 L_t7')
        k('s_cmp_eq_u32 s3, 4')
        k('s_cbranch_scc0 L_t56')
        k.srd(SGEN, PTR['wuv'], SIZES['wuv'])
        k('v_lshrrev_b32 v4, 5, v1')
        k('v_lshlrev_b32 v4, 18, v4')
        k('v_bfe_u32 v5, v1, 4, 1')
        k('v_lshl_add_u32 v4, v5, 16, v4')
        k('v_and_b32 v5, 15, v1')
        k('v_lshl_add_u32 v4, v5, 4, v4')
        k(f's_lshl_b32 s52, s{sJ}, 19')
        k(f's_lshl_b32 s53, s{sH}, 8')
        k('s_add_u32 s52, s52, s53')
        self.load64(W, lambda n: (4 * (n >> 3) + (n & 3) + 16 * ((n >> 2) & 1)) * 8192)
        k('s_branch L_tperm')
        k.label('L_t56')
        k('s_sub_u32 s54, s3, 5')
        k(f's_lshl_b32 s52, s{sH}, 1')
        k('s_add_u32 s52, s52, s54')
        k(f's_mov_b32 s55, s{sJ}')
        k.srd(SGEN, PTR['wo'], SIZES['wo'])
        k(f's_cmp_lt_u32 s{sJ}, 5')
        k('s_cbranch_scc1 L_tld')
        k(f's_mov_b32 s52, s{sH}')
        k(f's_sub_u32 s55, s{sJ}, 5')
        k('s_lshl_b32 s55, s55, 1')
        k('s_add_u32 s55, s55, s54')
        k.srd(SGEN, PTR['wd'], SIZES['wd'])
        k('s_cmp_lt_u32 s55, 5')
        k('s_cselect_b32 s52, s52, 64')
        k.label('L_tld')
        k('s_mov_b32 s37, s52')
        k('s_mov_b32 s38, s55')
        k(f's_mul_i32 s52, s52, {64*1280}')
        k('s_lshl_b32 s53, s55, 8')
        k('s_add_u32 s52, s52, s53')
        k('v_lshrrev_b32 v4, 4, v1')
        k(f'v_mul_u32_u24 v4, {16*1280}, v4')
        k('v_and_b32 v5, 15, v1')
        k('v_lshl_add_u32 v4, v5, 4, v4')
        self.load64(W, lambda n: n * 1280)
        k.label('L_tperm')
        k('s_barrier')
        k('s_barrier')
        k('s_waitcnt vmcnt(8)')
        self.perm8(W, B)
        k('s_waitcnt vmcnt(0)')
        self.perm8(W + 32, B + 32)
        self.stamp(10)
        k('s_branch L_go')
        k.label('L_t7')
        k('s_barrier')
        k('v_and_b32 v4, 15, v1')
        k('v_lshlrev_b32 v5, 2, v4')
        k(f'v_add_u32 v5, {MX}, v5')
        k('ds_read_b32 v16, v5')
        k(f'v_add_u32 v11, {PL}, v2')
        for i in range(4): k(f'v_mov_b32 v{20+i}, 0x3f803f80')
        k('v_and_b32 v5, 7, v1')
        k('v_lshlrev_b32 v5, 5, v5')
        k('v_bfe_u32 v6, v1, 3, 1')
        k('v_lshl_add_u32 v5, v6, 4, v5')
        k(f's_lshl_b32 s52, s{sP}, 9')
        k(f's_lshl_b32 s53, s{sG2}, 8')
        k('s_add_u32 s52, s52, s53')
        k(f's_add_u32 s52, s52, {X3S}')
        k('s_waitcnt lgkmcnt(0)')
        k(f'v_mul_f32 v16, {f32(128 ** -0.5 * LOG2E)}, v16')
        k(f'v_mov_b32 v17, s{sN}')
        k(f'v_mov_b32 v19, s{sN}')
        k('s_barrier')
        for kb in range(4):
            k(f'ds_read_b128 v[{24+4*kb}:{27+4*kb}], v11 offset:{1024*kb}')
        for kb in range(4):
            k(f's_waitcnt lgkmcnt({3-kb})')
            c = '0' if kb == 0 else 'v[40:43]'
            k(f'v_mfma_f32_16x16x32_bf16 v[40:43], v[20:23], v[{24+4*kb}:{27+4*kb}], {c}')
        k('v_mov_b32 v18, v40')
        k('s_mov_b64 exec, 0xffff')
        k(f'buffer_store_dwordx4 v[16:19], v5, s[{SWS}:{SWS+3}], s52 offen sc1')
        k('s_mov_b64 exec, -1')
        k.label('L_go')
        self.gatherO()
        k('s_barrier')
        self.stamp(12)
        k('s_cmp_eq_u32 s3, 7')
        k('s_cbranch_scc1 L_fin')
        k('s_cmp_eq_u32 s3, 4')
        k('s_cbranch_scc0 L_e')
        k('v_bfe_u32 v4, v1, 2, 1')
        k('v_lshlrev_b32 v4, 8, v4')
        k('v_and_b32 v5, 1, v1')
        k('v_lshl_add_u32 v4, v5, 7, v4')
        k('v_lshrrev_b32 v5, 4, v1')
        k('v_lshl_add_u32 v4, v5, 5, v4')
        k(f'v_add_u32 v4, {OH}, v4')
        k(f'ds_read_b128 v[{A}:{A+3}], v4')
        k(f'ds_read_b128 v[{A+4}:{A+7}], v4 offset:16')
        k(f's_lshl_b32 s52, s{sH}, 3')
        k(f's_add_u32 s52, s52, s{sJ}')
        k('s_lshl_b32 s52, s52, 10')
        k(f's_add_u32 s52, s52, {X4}')
        self.gemv64(B, A, D)
        self.publish(D, 12, 3, 2, 52, nsum=2)
        self.end()
        k.label('L_e')
        G = 16
        k(f's_lshl_b32 s52, s{sH}, 13')
        k(f's_cmp_lt_u32 s{sJ}, 5')
        k('s_cbranch_scc1 L_e1')
        k('s_cmp_ge_u32 s37, 27')
        k('s_cbranch_scc1 L_endE')
        k(f's_add_u32 s52, s52, {XF}')
        self.gather8(2, 52, G, 4)
        for r in range(4): self.rbf(G + r)
        for r in range(4):
            k(f'v_mul_f32 v{G+4+r}, v{G+r}, v{G+r}')
        k(f's_mov_b32 s54, {f32(0.044715)}')
        for r in range(4):
            k(f'v_fma_f32 v{G+4+r}, v{G+4+r}, s54, 1.0')
        for r in range(4):
            k(f'v_mul_f32 v{G+4+r}, v{G+4+r}, v{G+r}')
        for r in range(4):
            k(f'v_mul_f32 v{G+4+r}, {f32(-2*math.sqrt(2/math.pi)*LOG2E)}, v{G+4+r}')
        for r in range(4):
            k(f'v_exp_f32 v{G+4+r}, v{G+4+r}')
        for r in range(4):
            k(f'v_add_f32 v{G+4+r}, 1.0, v{G+4+r}')
        for r in range(4):
            k(f'v_rcp_f32 v{G+4+r}, v{G+4+r}')
        for r in range(4):
            k(f'v_mul_f32 v{G+4+r}, v{G+4+r}, v{G+r}')
        for r in range(4): self.rbf(G + 4 + r)
        for r in range(4):
            k(f'v_mul_f32_dpp v{G+4+r}, v{G+r}, v{G+4+r} row_ror:8 {DPP}')
        for r in range(4):
            k(f'v_mov_b32 v{G+r}, v{G+4+r}')
        k('s_mov_b32 s55, 0')
        k('s_lshl_b32 s53, s38, 5')
        k('s_add_u32 s53, s53, s37')
        k('s_lshl_b32 s53, s53, 10')
        k(f's_add_u32 s56, s53, {X5Y}')
        k('s_branch L_e2')
        k.label('L_e1')
        k(f's_add_u32 s52, s52, {X4}')
        self.gather8(2, 52, G, 4)
        k('s_sub_u32 s55, s3, 5')
        k('s_lshl_b32 s55, s55, 7')
        k('s_lshl_b32 s53, s38, 6')
        k('s_add_u32 s53, s53, s37')
        k('s_lshl_b32 s53, s53, 10')
        k(f's_add_u32 s56, s53, {X5S}')
        k.label('L_e2')
        self.stamp(13)
        k('s_sub_u32 s54, s3, 5')
        k('s_lshl_b32 s54, s54, 9')
        k(f's_add_u32 s54, s54, {ACT}')
        self.act_to_lds(G, 's54')
        k('s_add_u32 s54, s54, s55')
        k('v_bfe_u32 v4, v1, 2, 1')
        k('v_lshlrev_b32 v4, 8, v4')
        k('v_lshrrev_b32 v5, 4, v1')
        k('v_lshl_add_u32 v4, v5, 5, v4')
        k('v_add_u32 v4, s54, v4')
        k('s_waitcnt lgkmcnt(0)')
        k(f'ds_read_b128 v[{A}:{A+3}], v4')
        k(f'ds_read_b128 v[{A+4}:{A+7}], v4 offset:16')
        self.gemv64(B, A, D)
        self.publish(D, 12, 3, 2, 56)
        k.label('L_endE')
        self.end()
        k.label('L_fin')
        k(f's_cmp_lt_u32 s{sJ}, 5')
        k('s_cbranch_scc1 L_endF')
        k(f's_sub_u32 s52, s{sJ}, 5')
        k('s_lshl_b32 s52, s52, 5')
        k(f's_add_u32 s37, s52, s{sH}')
        k('s_cmp_ge_u32 s37, 80')
        k('s_cbranch_scc1 L_endF')
        k('s_lshr_b32 s38, s37, 4')
        k('s_and_b32 s39, s37, 15')
        k('s_bfe_u32 s52, s39, 0x10002')
        k('s_mul_i32 s52, s52, 640')
        k('s_lshl_b32 s53, s38, 7')
        k('s_add_u32 s52, s52, s53')
        k('s_and_b32 s53, s39, 3')
        k('s_lshl_b32 s53, s53, 5')
        k('s_add_u32 s52, s52, s53')
        k('s_lshr_b32 s53, s39, 3')
        k('s_lshl_b32 s53, s53, 2')
        k('s_add_u32 s52, s52, s53')
        k('v_and_b32 v4, 3, v1')
        k('v_lshrrev_b32 v5, 4, v1')
        k('v_lshl_add_u32 v10, v4, 3, v5')
        k('v_add_lshl_u32 v10, v10, s52, 1')
        k(f'buffer_load_ushort v11, v10, s[{SX}:{SX+3}], 0 offen')
        k('v_lshrrev_b32 v5, 2, v1')
        k('v_lshlrev_b32 v5, 10, v5')
        k('v_lshl_add_u32 v5, v4, 4, v5')
        k('s_lshl_b32 s54, s39, 6')
        k('s_lshl_b32 s52, s38, 15')
        k('s_add_u32 s52, s52, s54')
        k(f's_add_u32 s52, s52, {X5Y}')
        k('s_add_u32 s53, s52, 16384')
        Y, Z = 16, 32
        for i in range(4): k(f'v_mov_b32 v{Y+4+i}, v3')
        k('s_mov_b32 s56, -1')
        k('s_mov_b32 s57, 0xfff')
        def loadsy():
            k(f'buffer_load_dwordx4 v[{Y}:{Y+3}], v5, s[{SWS}:{SWS+3}], s52 offen sc1')
            k('s_mov_b64 exec, s[56:57]')
            k(f'buffer_load_dwordx4 v[{Y+4}:{Y+7}], v5, s[{SWS}:{SWS+3}], s53 offen sc1')
            k('s_mov_b64 exec, -1')
        self.poll(loadsy, lambda: self.tagcheck(list(range(Y, Y + 8)), 4, 0xff))
        def red4(R):
            for e in range(2):
                k(f'v_permlane32_swap_b32 v{R+e}, v{R+2+e}')
            for e in range(2):
                k(f'v_add_f32 v{R+e}, v{R+e}, v{R+2+e}')
            k(f'v_permlane16_swap_b32 v{R}, v{R+1}')
            k(f'v_add_f32 v{R}, v{R}, v{R+1}')
            for ror in (8, 4):
                k(f'v_add_f32_dpp v{R}, v{R}, v{R} row_ror:{ror} {DPP}')
        for i in range(4): k(f'v_add_f32 v{Y+i}, v{Y+i}, v{Y+4+i}')
        red4(Y)
        self.rbf(Y)
        k(f'v_mul_f32 v{Y+1}, {f32(-LOG2E)}, v{Y}')
        k(f'v_exp_f32 v{Y+1}, v{Y+1}')
        k(f'v_add_f32 v{Y+1}, 1.0, v{Y+1}')
        k(f'v_rcp_f32 v{Y+1}, v{Y+1}')
        k(f'v_mul_f32 v{Y}, v{Y}, v{Y+1}')
        self.rbf(Y)
        k('v_lshlrev_b32 v11, 16, v11')
        self.stamp(13)
        k('s_lshl_b32 s52, s38, 16')
        k('s_add_u32 s52, s52, s54')
        k(f's_add_u32 s52, s52, {X5S}')
        k('s_add_u32 s53, s52, 16384')
        k('s_add_u32 s54, s53, 16384')
        k('s_add_u32 s55, s54, 16384')
        k.srd(SGEN, PTR['out'], SIZES['out'])
        def loadss():
            for it in range(4):
                k(f'buffer_load_dwordx4 v[{Z+4*it}:{Z+4*it+3}], v5, s[{SWS}:{SWS+3}], s{52+it} offen sc1')
        self.poll(loadss, lambda: self.tagcheck(list(range(Z, Z + 16)), 4, 0xff))
        self.stamp(14)
        for st in (8, 4):
            for i in range(0, st, 2):
                k(f'v_pk_add_f32 v[{Z+i}:{Z+i+1}], v[{Z+i}:{Z+i+1}], v[{Z+st+i}:{Z+st+i+1}]')
        red4(Z)
        self.rbf(Z)
        k(f'v_mul_f32 v{Z}, v{Z}, v{Y}')
        self.rbf(Z)
        k(f'v_add_f32 v{Z}, v{Z}, v11')
        k(f'v_cvt_pk_bf16_f32 v{Z}, v{Z}, v{Z}')
        k('s_mov_b32 s56, 0x000f000f')
        k('s_mov_b32 s57, 0x000f000f')
        k('s_mov_b64 exec, s[56:57]')
        k(f'buffer_store_short v{Z}, v10, s[{SGEN}:{SGEN+3}], 0 offen')
        k('s_cmp_eq_u32 s37, 0')
        k('s_cbranch_scc0 L_endF')
        k('s_mov_b64 exec, 1')
        k(f'v_mov_b32 v4, s{sN}')
        k(f'v_mov_b32 v5, {EPOCH}')
        k(f'buffer_store_dword v4, v5, s[{SWS}:{SWS+3}], 0 offen sc1')
        k.label('L_endF')
        self.end()

    def build(self):
        k = self.k
        self.prologue()
        k('s_cmp_ge_u32 s3, 4')
        k('s_cbranch_scc1 L_h')
        self.twave()
        k.label('L_h')
        self.hwaves()
        k.label('L_exit')
        k('s_endpgm')
        k.lines = fix_hazards(k.lines)
        return module([k], [(KNAME, 256, 512, LDS_BYTES)])

if __name__ == '__main__':
    out = sys.argv[1]
    kw = {}
    for a_ in sys.argv[2:]:
        n, val = a_.split('=')
        kw[n] = int(val) if val.lstrip('-').isdigit() else val
    open(out, 'w').write(Gen(**kw).build())
```

```python
import sys, math
sys.path.insert(0, 'gen')
from asm import *

EPOCH = 0
TBL = 0x001000
X1  = 0x010000
X2  = 0x060000
XF  = 0x080000
X3AS = 0x0C0000
X4  = 0x0D0000
X5S = 0x110000
X5Y = 0x160000
DUAL = 0x680000 - 0x010000
X3A = 0x200000
X3B = 0x600000
STAMP = 0x700000
WS_SIZE = 0x800000
NW = 8

RS = 1056
PL = 0
MX = PL + 4096
FLG = MX + 256
ACT = FLG + 256
XN = ACT + 1024
QL = 6144
CKV = QL + 16 * RS
assert CKV % 256 == 0 and CKV + 128 * RS <= 160 * 1024
LDS_BYTES = 160 * 1024

PTR = dict(x=4, ckv=6, wq=8, wuk=10, wuv=12, wo=14, bx=16, wg=18, wu=20, wd=22, out=24, dbg=26, ws=28)
sN, sH, sJ, sP, sG2, sB, sHO = 30, 31, 32, 33, 34, 35, 36
SWS, SGEN, SX = 40, 44, 48
sT = 52
sMHI = 60
sSELLO, sSELHI, sMFF, sMHI16, sCNT, sLOC, sTAG, sGRP = 62, 63, 64, 65, 66, 67, 68, 69
sMASK = 70
sSTAMP = 86
SPIN = 1 << 18

LOG2E = 1.4426950408889634
def f32(x):
    import struct
    return '0x%08x' % struct.unpack('<I', struct.pack('<f', x))[0]

DPP = 'row_mask:0xf bank_mask:0xf'

class Gen:
    def __init__(self, stamps=0, nt='', depth=8, ntckv='', n0=20, wo_late=12, pref=1, forcesc1=0, tailwin=16, slp=1,
                 ftrig=0, ttrig=0, tail=1, uv=1):
        self.k = K(KNAME, vgpr=256)
        self.stamps = stamps
        self.nt = nt
        self.ntckv = ntckv
        self.depth = depth
        self.n0 = n0
        self.wo_late = wo_late
        self.pref = pref
        self.forcesc1 = forcesc1
        self.tailwin = tailwin
        self.slp = slp
        self.ftrig = ftrig
        self.ttrig = ttrig
        self.tail = tail
        self.uv = uv
        self.nof1 = 0

    def stamp(self, i):
        if self.stamps:
            self.k(f's_memrealtime s[{sSTAMP}:{sSTAMP+1}]')
            self.k('s_waitcnt lgkmcnt(0)')
            self.k(f'v_writelane_b32 v254, s{sSTAMP}, {i}')

    def end(self):
        k = self.k
        if self.stamps:
            k('s_branch L_stampout')
        else:
            k('s_endpgm')

    def stampout(self):
        k = self.k
        k.label('L_stampout')
        self.stamp(15)
        k(f'v_writelane_b32 v254, s{sSTAMP+2}, 0')
        k('s_mov_b64 exec, 0xffff')
        k(f's_lshl_b32 s52, s2, 3')
        k(f's_add_u32 s52, s52, s3')
        k(f's_lshl_b32 s52, s52, 6')
        k(f's_add_u32 s52, s52, {STAMP}')
        k('v_lshlrev_b32 v1, 2, v1')
        k(f'buffer_store_dword v254, v1, s[{SWS}:{SWS+3}], s52 offen')
        k('s_endpgm')

    def mpoll(self, n, load, check, pre=None, init=None, after_issue=None):
        k = self.k
        lp, ld = k.newlabel('Lp'), k.newlabel('Ld')
        M = lambda p: f's[{sMASK+2*p}:{sMASK+2*p+1}]'
        k(f's_mov_b32 s{sCNT}, {SPIN}')
        for p in range(n):
            if init and init(p): init(p)(sMASK + 2 * p)
            else: k(f's_mov_b64 {M(p)}, -1')
        k.label(lp)
        if pre:
            k('s_mov_b64 exec, -1')
            pre()
        for p in range(n):
            k(f's_mov_b64 exec, {M(p)}')
            load(p)
        if after_issue: after_issue()
        for p in range(n):
            k(f's_mov_b64 exec, {M(p)}')
            k(f's_waitcnt vmcnt({n-1-p})')
            check(p, M(p))
        if n == 1:
            k(f's_or_b64 vcc, {M(0)}, {M(0)}')
        else:
            k(f's_or_b64 vcc, {M(0)}, {M(1)}')
            for p in range(2, n): k(f's_or_b64 vcc, vcc, {M(p)}')
        k(f's_cbranch_scc0 {ld}')
        k(f's_sub_u32 s{sCNT}, s{sCNT}, 1')
        k(f's_cbranch_scc0 {lp}')
        k.label(ld)
        k('s_mov_b64 exec, -1')

    def untag(self, D):
        k = self.k
        def check(p, m):
            r = D + 4 * p
            for i in range(4):
                k(f'v_xor_b32 v{r+i}, s{sTAG}, v{r+i}')
            k(f'v_or3_b32 v4, v{r}, v{r+1}, v{r+2}')
            k(f'v_bitop3_b32 v4, v4, v{r+3}, s{sMFF} bitop3:0x54')
            k(f'v_cmp_ne_u32 {m}, 0, v4')
        return check

    def gather8(self, vaddr, sbase, D):
        k = self.k
        k(f's_add_u32 s{sT+7}, s{sbase}, 4096')
        self.mpoll(8, lambda p: k(f'buffer_load_dwordx4 v[{D+4*p}:{D+4*p+3}], v{vaddr}, s[{SWS}:{SWS+3}], s{sbase if p < 4 else sT+7} offen offset:{(p&3)*1024} sc1'),
                   self.untag(D))
        self.treeadd(D, 32)

    def treeadd(self, D, n):
        k = self.k
        st = n // 2
        while st >= 4:
            for i in range(0, st, 2):
                k(f'v_pk_add_f32 v[{D+i}:{D+i+1}], v[{D+i}:{D+i+1}], v[{D+st+i}:{D+st+i+1}]')
            st //= 2

    def perm8(self, W, B, nrows=8):
        k = self.k
        h = nrows // 2
        for t in range(8):
            for n2 in range(h):
                k(f'v_perm_b32 v{B+t*h+n2}, v{W+(2*n2+1)*4+(t>>1)}, v{W+(2*n2)*4+(t>>1)}, s{sSELHI if t&1 else sSELLO}')

    def lstore(self, ins):
        k = self.k
        if isinstance(ins, str): ins = [ins]
        a, b = k.newlabel('Ls'), k.newlabel('Le')
        k(f's_cmp_eq_u32 s{sLOC}, 1')
        k(f's_cbranch_scc0 {a}')
        for i in ins: k(i.replace(' @', ''))
        k(f's_branch {b}')
        k.label(a)
        for i in ins: k(i.replace(' @', ' sc1'))
        k.label(b)
        k('s_nop 1')

    def getloc(self):
        k = self.k
        k('v_mov_b32 v4, 0')
        k(f'ds_read_b32 v4, v4 offset:{FLG}')
        k('s_waitcnt lgkmcnt(0)')
        k(f'v_readfirstlane_b32 s{sLOC}, v4')

    def ldswait(self, off, val, first=False):
        k = self.k
        lp = k.newlabel('Lw')
        k('v_mov_b32 v4, 0')
        k.label(lp)
        if self.slp and not first: k(f's_sleep {self.slp}')
        k(f'ds_read_b32 v5, v4 offset:{off}')
        k('s_waitcnt lgkmcnt(0)')
        k('v_readfirstlane_b32 s52, v5')
        k(f's_cmp_ge_u32 s52, {val}')
        k(f's_cbranch_scc0 {lp}')

    def ldsinc(self, off):
        k = self.k
        k('s_mov_b64 exec, 1')
        k('v_mov_b32 v4, 0')
        k('v_mov_b32 v5, 1')
        k(f'ds_add_u32 v4, v5 offset:{off}')
        k('s_mov_b64 exec, -1')

    def tagpub(self, O, vaddr, soff, local):
        k = self.k
        for t in range(4):
            k(f'v_and_or_b32 v{O+t}, v{O+t}, s{sMFF}, v3')
        ins = f'buffer_store_dwordx4 v[{O}:{O+3}], v{vaddr}, s[{SWS}:{SWS+3}], s{soff} offen @'
        if local: self.lstore(ins)
        else: k(ins.replace(' @', ' sc1'))

    def publish(self, D, O, vaddr, soff, local):
        k = self.k
        for t in range(4):
            k(f'v_cndmask_b32 v{O+t}, v{D+4*t}, v{D+4*(t+4)}, s[{sMHI}:{sMHI+1}]')
        self.tagpub(O, vaddr, soff, local)

    def swapred(self, r, t, op):
        k = self.k
        for sw in ('v_permlane16_swap_b32', 'v_permlane32_swap_b32'):
            k(f'v_mov_b32 v{t}, v{r}')
            k(f'{sw} v{t}, v{r}')
            k(f'{op} v{r}, v{r}, v{t}')

    def red32(self, r, t, op='v_add_f32'):
        k = self.k
        k(f'{op}_dpp v{r}, v{r}, v{r} quad_perm:[1,0,3,2] {DPP}')
        k(f'{op}_dpp v{r}, v{r}, v{r} quad_perm:[2,3,0,1] {DPP}')
        self.red8(r, t, op)

    def red8(self, r, t, op):
        self.k(f'{op}_dpp v{r}, v{r}, v{r} row_ror:8 {DPP}')
        self.swapred(r, t, op)

    def rbf(self, r):
        k = self.k
        k(f'v_cvt_pk_bf16_f32 v{r}, v{r}, v{r}')
        k(f'v_and_b32 v{r}, s{sMHI16}, v{r}')

    def unpack(self, src, n, dst):
        k = self.k
        for i in range(n):
            k(f'v_lshlrev_b32 v{dst+2*i}, 16, v{src+i}')
            k(f'v_and_b32 v{dst+2*i+1}, s{sMHI16}, v{src+i}')

    def prologue(self):
        k = self.k
        W = 36
        k('s_getpc_b64 s[38:39]')
        if self.stamps:
            k(f's_memrealtime s[{sSTAMP+2}:{sSTAMP+3}]')
            k('v_mov_b32 v254, 0')
        k('s_cmp_ge_u32 s2, 256')
        k('s_cbranch_scc1 L_exit')
        k('s_load_dwordx16 s[4:19], s[0:1], 0')
        k('s_load_dwordx2 s[28:29], s[0:1], 96')
        k('s_load_dwordx8 s[20:27], s[0:1], 64')
        k('v_lshrrev_b32 v4, 6, v0')
        k('v_and_b32 v1, 63, v0')
        k('v_readfirstlane_b32 s3, v4')
        k(f's_and_b32 s{sGRP}, s2, 7')
        k(f's_lshr_b32 s53, s2, 3')
        k(f's_and_b32 s54, s53, 3')
        k(f's_lshl_b32 s54, s54, 3')
        k(f's_add_u32 s{sH}, s54, s{sGRP}')
        k(f's_lshr_b32 s{sJ}, s53, 2')
        if self.pref:
            k('s_add_u32 s54, s54, s3')
            k('s_lshl_b32 s54, s54, 9')
            k('v_lshl_add_u32 v4, v1, 7, s54')
            k('v_min_u32 v4, L_codeend-L_codestart-8, v4')
            k('s_mov_b64 exec, 15')
            k('global_load_dword v255, v4, s[38:39]')
            k('s_mov_b64 exec, -1')
        k('s_cmp_eq_u32 s3, 6')
        k('s_cbranch_scc0 L_pro1')
        self.xaddr()
        k(f's_mov_b32 s{SX+2}, {SIZES["x"]}')
        k(f's_mov_b32 s{SX+3}, 0x00020000')
        k('s_waitcnt lgkmcnt(0)')
        k(f's_mov_b64 s[{SX}:{SX+1}], s[{PTR["x"]}:{PTR["x"]+1}]')
        self.xloads()
        k.label('L_pro1')
        k('s_cmp_eq_u32 s3, 4')
        k('s_cbranch_scc0 L_pro2')
        k('v_lshrrev_b32 v4, 4, v1')
        k(f'v_mul_u32_u24 v4, {20*8192}, v4')
        k('v_and_b32 v5, 15, v1')
        k('v_lshl_add_u32 v4, v5, 4, v4')
        k(f's_mul_i32 s52, s{sJ}, {80*8192}')
        k(f's_lshl_b32 s54, s{sH}, 8')
        k('s_add_u32 s52, s52, s54')
        k(f's_mov_b32 s{SGEN+2}, {SIZES["wq"]}')
        k(f's_mov_b32 s{SGEN+3}, 0x00020000')
        k('s_movk_i32 s54, 8192')
        k('s_waitcnt lgkmcnt(0)')
        k(f's_mov_b64 s[{SGEN}:{SGEN+1}], s[{PTR["wq"]}:{PTR["wq"]+1}]')
        for n in range(20):
            k(f'buffer_load_dwordx4 v[{W+4*n}:{W+4*n+3}], v4, s[{SGEN}:{SGEN+3}], s52 offen {self.nt}')
            if n < 19: k('s_add_u32 s52, s52, s54')
        k.label('L_pro2')
        k('v_mov_b32 v11, 0')
        k('v_lshlrev_b32 v2, 4, v1')
        k(f's_and_b32 s{sG2}, s53, 1')
        k(f's_lshr_b32 s54, s53, 1')
        k(f's_lshl_b32 s55, s{sGRP}, 4')
        k(f's_add_u32 s{sP}, s54, s55')
        k(f's_lshr_b32 s{sB}, s{sP}, 6')
        k(f's_and_b32 s54, s54, 1')
        k(f's_lshl_b32 s54, s54, 4')
        k(f's_lshl_b32 s55, s{sJ}, 1')
        k(f's_add_u32 s54, s54, s55')
        k(f's_add_u32 s{sHO}, s54, s{sG2}')
        k(f's_mov_b32 s{sMHI}, 0')
        k(f's_mov_b32 s{sMHI+1}, -1')
        k(f's_mov_b32 s{sSELLO}, 0x05040100')
        k(f's_mov_b32 s{sSELHI}, 0x07060302')
        k(f's_mov_b32 s{sMFF}, 0xffffff00')
        k(f's_mov_b32 s{sMHI16}, 0xffff0000')
        k('v_lshlrev_b32 v4, 2, v1')
        k('v_mov_b32 v5, 0')
        k(f'ds_write_b32 v4, v5 offset:{FLG}')
        k('v_mov_b32 v5, 0xff800000')
        k(f'ds_write_b32 v4, v5 offset:{MX}')
        k('s_waitcnt lgkmcnt(0)')
        k(f's_load_dword s{sN}, s[28:29], {EPOCH}')
        k.srd(SWS, PTR['ws'], WS_SIZE)
        k.srd(SX, PTR['x'], SIZES['x'])

    def xaddr(self):
        k = self.k
        k('v_and_b32 v6, 3, v1')
        k('v_lshrrev_b32 v7, 3, v1')
        k('v_lshl_add_u32 v10, v7, 2, v6')
        k('v_bfe_u32 v7, v1, 2, 1')
        k('v_mul_u32_u24 v7, 1280, v7')
        k('v_mad_u32_u24 v6, v10, 40, v7')
        k('v_lshl_add_u32 v7, v10, 2, v7')
        k(f's_mul_i32 s55, s{sJ}, 160')

    def xloads(self):
        k = self.k
        XS = 12
        k(f'buffer_load_dwordx4 v[{XS}:{XS+3}], v6, s[{SX}:{SX+3}], 0 offen')
        k(f'buffer_load_dwordx4 v[{XS+4}:{XS+7}], v6, s[{SX}:{SX+3}], 0 offen offset:16')
        k(f'buffer_load_dwordx2 v[{XS+8}:{XS+9}], v6, s[{SX}:{SX+3}], 0 offen offset:32')
        k(f'buffer_load_dword v22, v7, s[{SX}:{SX+3}], s55 offen')
        k(f'buffer_load_dword v23, v7, s[{SX}:{SX+3}], s55 offen offset:128')

    def layernorm(self):
        k = self.k
        XS, U, B = 12, 180, 116
        k('v_bfe_u32 v7, v1, 2, 1')
        k('v_lshlrev_b32 v7, 8, v7')
        k('v_lshl_add_u32 v10, v10, 2, v7')
        k(f'v_add_u32 v10, {XN}, v10')
        k('s_waitcnt vmcnt(2)')
        self.stamp(2)
        self.unpack(XS, 10, U)
        for i in range(0, 10, 2):
            k(f'v_pk_add_f32 v[{B+i}:{B+i+1}], v[{U+i}:{U+i+1}], v[{U+10+i}:{U+11+i}]')
        k(f'v_pk_add_f32 v[{B}:{B+1}], v[{B}:{B+1}], v[{B+2}:{B+3}]')
        k(f'v_pk_add_f32 v[{B+4}:{B+5}], v[{B+4}:{B+5}], v[{B+6}:{B+7}]')
        k(f'v_pk_add_f32 v[{B}:{B+1}], v[{B}:{B+1}], v[{B+8}:{B+9}]')
        k(f'v_pk_add_f32 v[{B}:{B+1}], v[{B}:{B+1}], v[{B+4}:{B+5}]')
        k(f'v_add_f32 v4, v{B}, v{B+1}')
        self.red32(4, 5)
        k(f'v_mul_f32 v4, {f32(-1/640)}, v4')
        for i in range(0, 20, 2):
            k(f'v_pk_add_f32 v[{U+i}:{U+i+1}], v[{U+i}:{U+i+1}], v[4:5] op_sel_hi:[1,0]')
        k(f'v_pk_mul_f32 v[6:7], v[{U}:{U+1}], v[{U}:{U+1}]')
        k(f'v_pk_mul_f32 v[{B}:{B+1}], v[{U+2}:{U+3}], v[{U+2}:{U+3}]')
        for i in range(4, 20, 4):
            k(f'v_pk_fma_f32 v[6:7], v[{U+i}:{U+i+1}], v[{U+i}:{U+i+1}], v[6:7]')
            k(f'v_pk_fma_f32 v[{B}:{B+1}], v[{U+i+2}:{U+i+3}], v[{U+i+2}:{U+i+3}], v[{B}:{B+1}]')
        k(f'v_pk_add_f32 v[6:7], v[6:7], v[{B}:{B+1}]')
        self.rbf(4)
        k('v_add_f32 v6, v6, v7')
        k('s_waitcnt vmcnt(0)')
        self.unpack(22, 2, U)
        k(f'v_add_f32_dpp v6, v6, v6 quad_perm:[1,0,3,2] {DPP}')
        for i in range(0, 4, 2):
            k(f'v_pk_add_f32 v[{U+i}:{U+i+1}], v[{U+i}:{U+i+1}], v[4:5] op_sel_hi:[1,0]')
        k(f'v_add_f32_dpp v6, v6, v6 quad_perm:[2,3,0,1] {DPP}')
        for i in range(2):
            k(f'v_cvt_pk_bf16_f32 v{22+i}, v{U+2*i}, v{U+2*i+1}')
        k(f'v_add_f32_dpp v6, v6, v6 row_ror:8 {DPP}')
        self.unpack(22, 2, U)
        self.swapred(6, 5, 'v_add_f32')
        k(f'v_mul_f32 v6, {f32(1/640)}, v6')
        self.rbf(6)
        k(f'v_add_f32 v6, {f32(1e-5)}, v6')
        self.rbf(6)
        k('v_sqrt_f32 v6, v6')
        self.rbf(6)
        k('v_rcp_f32 v6, v6')
        for i in range(0, 4, 2):
            k(f'v_pk_mul_f32 v[{U+i}:{U+i+1}], v[{U+i}:{U+i+1}], v[6:7] op_sel_hi:[1,0]')
        for i in range(2):
            k(f'v_cvt_pk_bf16_f32 v{22+i}, v{U+2*i}, v{U+2*i+1}')
        k(f'ds_write2_b32 v10, v22, v23 offset0:0 offset1:32')
        self.ldsinc(FLG + 24)
        self.stamp(3)

    def nonce(self):
        k = self.k
        k('s_waitcnt lgkmcnt(0)')
        k(f's_add_u32 s{sN}, s{sN}, 1')
        k(f's_and_b32 s{sTAG}, s{sN}, 0xff')
        k(f'v_mov_b32 v3, s{sTAG}')

    def phaseA(self):
        k = self.k
        XO, W, B, D = 24, 36, 116, 196
        def trig(cnt):
            if cnt == self.ftrig:
                lab = k.newlabel('Lb')
                k('s_cmp_eq_u32 s3, 4')
                k(f's_cbranch_scc0 {lab}')
                self.ldsinc(FLG + 16)
                k.label(lab)
        self.nonce()
        trig(20)
        k('v_bfe_u32 v6, v1, 2, 1')
        k('v_lshlrev_b32 v6, 8, v6')
        k('v_lshrrev_b32 v7, 4, v1')
        k('v_mad_u32_u24 v6, v7, 40, v6')
        k('s_waitcnt vmcnt(12)')
        trig(12)
        self.perm8(W, B)
        self.ldswait(FLG + 24, 1, first=True)
        for i in range(5):
            k(f'ds_read_b64 v[{XO+2*i}:{XO+2*i+1}], v6 offset:{XN+8*i}')
        k('s_waitcnt vmcnt(4)')
        trig(4)
        k('s_waitcnt lgkmcnt(0)')
        for t in range(8):
            k(f'v_mfma_f32_16x16x32_bf16 v[{D+4*t}:{D+4*t+3}], v[{XO}:{XO+3}], v[{B+4*t}:{B+4*t+3}], 0')
            for n2 in range(4):
                k(f'v_perm_b32 v{B+32+t*4+n2}, v{W+32+(2*n2+1)*4+(t>>1)}, v{W+32+(2*n2)*4+(t>>1)}, s{sSELHI if t&1 else sSELLO}')
        k('s_waitcnt vmcnt(0)')
        trig(0)
        self.stamp(4)
        for t in range(8):
            k(f'v_mfma_f32_16x16x32_bf16 v[{D+4*t}:{D+4*t+3}], v[{XO+4}:{XO+7}], v[{B+32+4*t}:{B+32+4*t+3}], v[{D+4*t}:{D+4*t+3}]')
            for n2 in range(2):
                k(f'v_perm_b32 v{B+64+t*2+n2}, v{W+64+(2*n2+1)*4+(t>>1)}, v{W+64+(2*n2)*4+(t>>1)}, s{sSELHI if t&1 else sSELLO}')
        for t in range(8):
            k(f'v_mfma_f32_16x16x16_bf16 v[{D+4*t}:{D+4*t+3}], v[{XO+8}:{XO+9}], v[{B+64+2*t}:{B+64+2*t+1}], v[{D+4*t}:{D+4*t+3}]')
        O = 12
        for t in range(4):
            k(f'v_cndmask_b32 v{O+t}, v{D+4*t}, v{D+4*(t+4)}, s[{sMHI}:{sMHI+1}]')
        for t in range(4):
            k(f'v_and_or_b32 v{O+t}, v{O+t}, s{sMFF}, v3')
        lab = k.newlabel('Lb')
        k('s_cmp_eq_u32 s3, 4')
        k(f's_cbranch_scc0 {lab}')
        k(f'buffer_store_dwordx4 v[{O}:{O+3}], v2, s[{SWS}:{SWS+3}], s58 offen')
        k(f's_add_u32 s58, s58, {DUAL}')
        self.ldsinc(FLG + 4)
        k.label(lab)
        k(f'buffer_store_dwordx4 v[{O}:{O+3}], v2, s[{SWS}:{SWS+3}], s58 offen sc1')
        self.stamp(5)

    def phaseB(self):
        k = self.k
        W, G, D, A = 16, 80, 112, 128
        k('s_setprio 1')
        k.srd(SGEN, PTR['wuk'], SIZES['wuk'])
        k('v_and_b32 v4, 15, v1')
        k('v_lshlrev_b32 v4, 15, v4')
        k('v_and_b32 v5, 48, v1')
        k('v_add_u32 v4, v4, v5')
        k(f's_lshl_b32 s52, s{sJ}, 19')
        k(f's_lshl_b32 s53, s{sH}, 8')
        k('s_add_u32 s52, s52, s53')
        k('s_barrier')
        for ct in range(4):
            for t in range(4):
                r = W + 16 * ct + 4 * t
                k(f'buffer_load_dwordx4 v[{r}:{r+3}], v4, s[{SGEN}:{SGEN+3}], s52 offen offset:{64*t} {self.nt}')
            if ct < 3: k('s_add_u32 s52, s52, 8192')
        self.stamp(1)
        self.nonce()
        if self.ttrig >= 0:
            k(f's_waitcnt vmcnt({self.ttrig})')
            self.ldsinc(FLG + 20)
        self.stamp(4)
        self.ldswait(FLG + 4, 1, first=True)
        self.stamp(5)
        k(f's_lshl_b32 s56, s{sH}, 13')
        k(f's_add_u32 s56, s56, {X1}')
        def pre():
            self.getloc()
            k(f's_cmp_eq_u32 s{sLOC}, 2')
            k(f's_cselect_b32 s52, {DUAL}, 0')
            k('s_add_u32 s52, s52, s56')
            k('s_add_u32 s53, s52, 4096')
        def aft():
            if self.ftrig == -1: self.ldsinc(FLG + 16)
            if self.ttrig == -1: self.ldsinc(FLG + 20)
        self.mpoll(8, lambda p: k(f'buffer_load_dwordx4 v[{G+4*p}:{G+4*p+3}], v2, s[{SWS}:{SWS+3}], s{52 + (p>>2)} offen offset:{(p&3)*1024} sc1'),
                   self.untag(G), pre=pre, after_issue=aft)
        if self.ftrig == -2: self.ldsinc(FLG + 16)
        if self.ttrig == -2: self.ldsinc(FLG + 20)
        self.treeadd(G, 32)
        self.stamp(6)
        self.ldswait(FLG, 1, first=True)
        self.act_to_lds(G, ACT)
        k('v_bfe_u32 v4, v1, 2, 1')
        k('v_lshlrev_b32 v4, 8, v4')
        k('v_and_b32 v5, 48, v1')
        k('v_add_u32 v4, v4, v5')
        k('s_waitcnt lgkmcnt(0)')
        for t in range(4):
            k(f'ds_read_b128 v[{A+4*t}:{A+4*t+3}], v4 offset:{ACT+64*t}')
        k('v_and_b32 v4, 15, v1')
        k('v_lshlrev_b32 v4, 4, v4')
        k('v_bfe_u32 v5, v1, 4, 1')
        k('v_lshl_add_u32 v4, v5, 16, v4')
        k(f's_lshl_b32 s52, s{sH}, 11')
        k(f's_lshl_b32 s53, s{sJ}, 8')
        k('s_add_u32 s52, s52, s53')
        k(f's_add_u32 s52, s52, {X2}')
        k(f's_and_b32 s53, s{sN}, 0xffff')
        k('v_mov_b32 v5, s53')
        for t in range(4):
            k(f's_waitcnt lgkmcnt({3-t})')
            for ct in range(4):
                c = '0' if t == 0 else f'v[{D+4*ct}:{D+4*ct+3}]'
                r = W + 16 * ct + 4 * t
                k(f'v_mfma_f32_16x16x32_bf16 v[{D+4*ct}:{D+4*ct+3}], v[{A+4*t}:{A+4*t+3}], v[{r}:{r+3}], {c}')
        k(f'v_cvt_pk_bf16_f32 v9, v{D}, v{D+4}')
        k(f'v_cvt_pk_bf16_f32 v11, v{D+8}, v{D+12}')
        k('v_lshl_or_b32 v8, v9, 16, v5')
        k(f'v_and_or_b32 v9, v9, s{sMHI16}, v5')
        k('v_lshl_or_b32 v10, v11, 16, v5')
        k(f'v_and_or_b32 v11, v11, s{sMHI16}, v5')
        k('s_mov_b32 exec_hi, 0')
        k(f'buffer_store_dwordx4 v[8:11], v4, s[{SWS}:{SWS+3}], s52 offen sc1')
        k('s_mov_b64 exec, -1')
        self.ldsinc(FLG + 8)
        self.stamp(3)

    def act_to_lds(self, G, base):
        k = self.k
        k('v_and_b32 v4, 31, v1')
        k('v_lshlrev_b32 v4, 4, v4')
        k('v_lshrrev_b32 v5, 5, v1')
        k('v_lshl_add_u32 v4, v5, 3, v4')
        k(f'v_cvt_pk_bf16_f32 v{G}, v{G}, v{G+1}')
        k(f'v_cvt_pk_bf16_f32 v{G+1}, v{G+2}, v{G+3}')
        if isinstance(base, int):
            k(f'ds_write_b64 v4, v[{G}:{G+1}] offset:{base}')
        else:
            k(f'v_add_u32 v4, {base}, v4')
            k(f'ds_write_b64 v4, v[{G}:{G+1}]')

    def placement(self):
        k = self.k
        k('s_getreg_b32 s57, hwreg(HW_REG_XCC_ID)')
        k('s_and_b32 s57, s57, 7')
        for i in range(4): k(f'v_mov_b32 v{8+i}, -1')
        def clear(fl):
            k(f's_lshl_b32 s52, s{sGRP}, 5')
            k(f's_add_u32 s52, s52, s{sHO}')
            k('s_lshl_b32 s54, s52, 8')
            k(f's_add_u32 s54, s54, {X3AS}')
            k(f's_lshl_b32 s52, s52, 14')
            k(f's_add_u32 s52, s52, {X3A}')
            for i in range(16):
                k(f'buffer_store_dwordx4 v[8:11], v2, s[{SWS}:{SWS+3}], s52 offen offset:{(i&3)*1024} {fl}')
                if i & 3 == 3 and i < 15: k('s_add_u32 s52, s52, 4096')
            k('s_mov_b64 exec, 0xffff')
            k(f'buffer_store_dwordx4 v[12:15], v2, s[{SWS}:{SWS+3}], s54 offen {fl}')
            k('s_mov_b64 exec, -1')
        k('s_barrier')
        self.nonce()
        k(f's_lshl_b32 s53, s{sN}, 3')
        k('s_add_u32 s56, s57, s53')
        k(f's_lshl_b32 s53, s{sGRP}, 7')
        k(f's_add_u32 s53, s53, {TBL}')
        k('s_lshr_b32 s54, s2, 3')
        k('s_lshl_b32 s54, s54, 2')
        k('v_mov_b32 v4, s54')
        k('v_mov_b32 v5, s56')
        k('s_mov_b64 exec, 1')
        k(f'buffer_store_dword v5, v4, s[{SWS}:{SWS+3}], s53 offen')
        k('s_mov_b64 exec, -1')
        k(f's_not_b32 s54, s{sN}')
        for i in range(4): k(f'v_mov_b32 v{12+i}, s54')
        clear('')
        k(f's_lshl_b32 s52, s{sH}, 3')
        k(f's_add_u32 s52, s52, s{sJ}')
        k('s_lshl_b32 s52, s52, 10')
        k(f's_add_u32 s52, s52, {X4}')
        k(f'buffer_store_dwordx4 v[12:15], v2, s[{SWS}:{SWS+3}], s52 offen')
        k('v_and_b32 v6, 31, v1')
        k('v_lshlrev_b32 v6, 2, v6')
        self.stamp(1)
        lp, ld = k.newlabel('Lp'), k.newlabel('Ld')
        k(f's_mov_b32 s{sCNT}, 2')
        k(f's_mov_b32 s{sLOC}, 1')
        k.label(lp)
        k(f'buffer_load_dword v5, v6, s[{SWS}:{SWS+3}], s53 offen sc1')
        k('s_waitcnt vmcnt(0)')
        k('v_cmp_ne_u32 vcc, s56, v5')
        k('s_and_b64 vcc, exec, vcc')
        if not self.forcesc1: k(f's_cbranch_scc0 {ld}')
        k(f's_sub_u32 s{sCNT}, s{sCNT}, 1')
        k(f's_cbranch_scc0 {lp}')
        k(f's_mov_b32 s{sLOC}, 2')
        clear('sc1')
        k('s_waitcnt vmcnt(0)')
        k.label(ld)
        k('v_mov_b32 v4, 0')
        k(f'v_mov_b32 v5, s{sLOC}')
        k(f'ds_write_b32 v4, v5 offset:{FLG}')
        self.stamp(2)

    def gatherQ(self):
        k = self.k
        G = 192
        self.ldswait(FLG + 8, 2)
        k(f's_lshl_b32 s52, s{sB}, 16')
        k(f's_lshl_b32 s53, s{sG2}, 15')
        k('s_add_u32 s52, s52, s53')
        k('s_sub_u32 s54, s3, 4')
        k('s_lshl_b32 s53, s54, 13')
        k('s_add_u32 s52, s52, s53')
        k(f's_add_u32 s52, s52, {X2}')
        k('s_add_u32 s53, s52, 4096')
        def check(p, m):
            r = G + 4 * p
            k(f'v_xor_b32 v4, s{sN}, v{r}')
            for i in range(1, 4):
                k(f'v_bitop3_b32 v4, v4, v{r+i}, s{sN} bitop3:0xf6')
            k(f'v_cmp_ne_u16 {m}, 0, v4')
        self.mpoll(8, lambda p: k(f'buffer_load_dwordx4 v[{G+4*p}:{G+4*p+3}], v2, s[{SWS}:{SWS+3}], s{52 if p < 4 else 53} offen offset:{(p&3)*1024} sc1'), check)
        self.stamp(8)
        k(f's_mul_i32 s54, s54, {4*RS}')
        k('v_lshl_add_u32 v4, v1, 3, s54')
        for p in range(8):
            r = G + 4 * p
            k(f'v_perm_b32 v{r}, v{r+1}, v{r}, s{sSELHI}')
            k(f'v_perm_b32 v{r+1}, v{r+3}, v{r+2}, s{sSELHI}')
            k(f'ds_write_b64 v4, v[{r}:{r+1}] offset:{QL + (p>>1)*RS + (p&1)*512}')
        k('s_waitcnt lgkmcnt(0)')

    def x3a(self):
        k = self.k
        G, ST, U = 192, 200, 208
        k(f's_lshl_b32 s52, s{sGRP}, 5')
        k(f's_add_u32 s52, s52, s{sHO}')
        k('s_lshl_b32 s53, s52, 8')
        k(f's_add_u32 s53, s53, {X3AS}')
        k('s_lshl_b32 s52, s52, 3')
        k('s_add_u32 s52, s52, s3')
        k('s_lshl_b32 s52, s52, 11')
        k(f's_add_u32 s52, s52, {X3A}')
        k('v_lshrrev_b32 v5, 3, v1')
        k('v_lshlrev_b32 v5, 4, v5')
        k(f's_lshl_b32 s56, s{sHO}, 3')
        k('s_add_u32 s56, s56, s3')
        k('s_lshl_b32 s56, s56, 3')
        k(f's_add_u32 s56, s56, s{sGRP}')
        k('s_lshl_b32 s56, s56, 8')
        k(f's_add_u32 s56, s56, {X3B}')
        k('v_and_b32 v6, 7, v1')
        k('v_lshlrev_b32 v6, 4, v6')
        k('v_lshrrev_b32 v7, 5, v1')
        k('v_lshl_add_u32 v6, v7, 7, v6')
        def load(p):
            if p < 2: k(f'buffer_load_dwordx4 v[{ST+4*p}:{ST+4*p+3}], v5, s[{SWS}:{SWS+3}], s53 offen offset:{128*p} sc1')
            else: k(f'buffer_load_dwordx4 v[{G+4*(p-2)}:{G+4*(p-2)+3}], v2, s[{SWS}:{SWS+3}], s52 offen offset:{1024*(p-2)} sc1')
        def check(p, m):
            if p < 2:
                k(f'v_xor_b32 v4, s{sN}, v{ST+4*p+1}')
                k(f'v_bitop3_b32 v4, v4, v{ST+4*p+3}, s{sN} bitop3:0xf6')
                k(f'v_cmp_ne_u32 {m}, 0, v4')
            else:
                r = G + 4 * (p - 2)
                k(f'v_max3_u32 v4, v{r}, v{r+1}, v{r+2}')
                k(f'v_max_u32 v4, v4, v{r+3}')
                k(f'v_cmp_eq_u32 {m}, -1, v4')
        self.mpoll(4, load, check)
        self.stamp(11)
        k(f'v_max_f32 v8, v{ST}, v{ST+4}')
        self.unpack(G, 2, U)
        k(f'v_max_f32_dpp v8, v8, v8 row_ror:8 {DPP}')
        k('v_mov_b32 v9, v8')
        self.unpack(G + 2, 2, U + 4)
        k('v_permlane16_swap_b32 v9, v8')
        k('v_max_f32 v8, v8, v9')
        k('v_mov_b32 v9, v8')
        self.unpack(G + 4, 2, U + 8)
        k('v_permlane32_swap_b32 v9, v8')
        k('v_max_f32 v8, v8, v9')
        k(f'v_sub_f32 v{ST}, v{ST}, v8')
        k(f'v_sub_f32 v{ST+4}, v{ST+4}, v8')
        k(f'v_exp_f32 v{ST}, v{ST}')
        k(f'v_exp_f32 v{ST+4}, v{ST+4}')
        self.unpack(G + 6, 2, U + 12)
        k(f'v_mul_f32 v10, v{ST}, v{ST+2}')
        k(f'v_fmac_f32 v10, v{ST+4}, v{ST+6}')
        for e in range(0, 8, 2):
            k(f'v_pk_mul_f32 v[{U+e}:{U+e+1}], v[{U+e}:{U+e+1}], v[{ST}:{ST+1}] op_sel_hi:[1,0]')
        k(f'v_add_f32_dpp v10, v10, v10 row_ror:8 {DPP}')
        for e in range(0, 8, 2):
            k(f'v_pk_fma_f32 v[{U+e}:{U+e+1}], v[{U+8+e}:{U+9+e}], v[{ST+4}:{ST+5}], v[{U+e}:{U+e+1}] op_sel_hi:[1,0,1]')
        k('v_mov_b32 v9, v10')
        for e in range(4):
            k(f'v_permlane32_swap_b32 v{U+e}, v{U+4+e}')
        k('v_permlane32_swap_b32 v9, v10')
        for e in range(0, 4, 2):
            k(f'v_pk_add_f32 v[{U+e}:{U+e+1}], v[{U+e}:{U+e+1}], v[{U+4+e}:{U+5+e}]')
        k('v_add_f32 v10, v10, v9')
        k('v_mov_b32 v9, v10')
        for e in range(2):
            k(f'v_permlane16_swap_b32 v{U+e}, v{U+2+e}')
        k('v_permlane16_swap_b32 v9, v10')
        k(f'v_pk_add_f32 v[{U}:{U+1}], v[{U}:{U+1}], v[{U+2}:{U+3}]')
        k('v_add_f32 v10, v10, v9')
        k('v_rcp_f32 v9, v10')
        k('v_log_f32 v10, v10')
        for e in range(2):
            k(f'v_add_f32_dpp v{U+e}, v{U+e}, v{U+e} row_ror:8 {DPP}')
        k(f'v_mul_f32 v{U}, v{U}, v9')
        k(f'v_mul_f32 v{U+1}, v{U+1}, v9')
        k(f'v_cvt_pk_bf16_f32 v{U}, v{U}, v{U+1}')
        k(f'v_add_f32 v{U+2}, v10, v8')
        k(f'v_mov_b32 v{U+1}, v{U}')
        k(f'v_mov_b32 v{U+3}, s{sN}')
        k(f'v_permlane16_swap_b32 v{U}, v{U+1}')
        k('s_mov_b32 exec_lo, 0xff')
        k('s_mov_b32 exec_hi, 0xff')
        k(f'buffer_store_dwordx4 v[{U}:{U+3}], v6, s[{SWS}:{SWS+3}], s56 offen sc1')
        k('s_mov_b64 exec, -1')
        self.stamp(12)

    def mfma64(self, B, A, D, wait=True):
        k = self.k
        for st in range(2):
            if wait: k(f's_waitcnt lgkmcnt({1-st})')
            for t in range(8):
                c = '0' if st == 0 else f'v[{D+4*t}:{D+4*t+3}]'
                r = B + 32 * st + 4 * t
                aa = A[st]
                k(f'v_mfma_f32_16x16x32_bf16 v[{D+4*t}:{D+4*t+3}], v[{aa}:{aa+3}], v[{r}:{r+3}], {c}')

    def pvaddr(self):
        k = self.k
        k('v_lshrrev_b32 v4, 2, v1')
        k(f'v_mul_u32_u24 v9, {RS}, v4')
        k('v_and_b32 v4, 3, v1')
        k('v_lshl_add_u32 v9, v4, 3, v9')
        k('s_lshl_b32 s54, s3, 7')
        k(f's_add_u32 s54, s54, {CKV}')
        k('v_add_u32 v9, s54, v9')
        k(f'v_add_u32 v10, {64*RS}, v9')
        k('v_and_b32 v4, 15, v1')
        k('v_lshlrev_b32 v4, 3, v4')
        k('v_lshrrev_b32 v13, 4, v1')
        k('v_lshl_add_u32 v13, v13, 16, v4')
        k(f's_lshl_b32 s52, s{sGRP}, 1')
        k(f's_add_u32 s52, s52, s{sG2}')
        k('s_lshl_b32 s52, s52, 18')
        k('s_lshl_b32 s54, s3, 11')
        k('s_add_u32 s52, s52, s54')
        k(f's_and_b32 s54, s{sP}, 15')
        k('s_lshl_b32 s54, s54, 7')
        k('s_add_u32 s52, s52, s54')
        k(f's_add_u32 s39, s52, {X3A}')

    def trread(self, CT, i):
        ct, kb = i >> 2, i & 3
        for hf in range(2):
            r = CT + 16 * ct + 4 * kb + 2 * hf
            off = (32 * (kb & 1) + 16 * hf) * RS + 32 * ct
            self.k(f'ds_read_b64_tr_b16 v[{r}:{r+1}], v{9 if kb < 2 else 10} offset:{off}')

    def pv(self, CT, done):
        k = self.k
        PF, ACC, O = 208, 224, 240
        for kb in range(4):
            k(f'ds_read_b128 v[{PF+4*kb}:{PF+4*kb+3}], v2 offset:{PL+1024*kb}')
        nxt = done
        while nxt < min(done + 5, 16):
            self.trread(CT, nxt); nxt += 1
        first = nxt
        k('s_add_u32 s53, s39, 16384')
        k('s_add_u32 s54, s39, 32768')
        k('s_add_u32 s55, s39, 49152')
        last = None
        for i in range(16):
            ct, kb = i >> 2, i & 3
            if i < 4: ok = 2 * (nxt - done) + 3 - i
            else: ok = 2 * (nxt - 1 - max(i, done - 1))
            if ok != last: k(f's_waitcnt lgkmcnt({ok})')
            last = ok
            c = '0' if kb == 0 else f'v[{ACC+4*ct}:{ACC+4*ct+3}]'
            r = CT + 16 * ct + 4 * kb
            k(f'v_mfma_f32_16x16x32_bf16 v[{ACC+4*ct}:{ACC+4*ct+3}], v[{PF+4*kb}:{PF+4*kb+3}], v[{r}:{r+3}], {c}')
            if i >= 4 and nxt < 16:
                self.trread(CT, nxt); nxt += 1; last = None
            if i == 13:
                for r in range(4):
                    k(f'v_cvt_pk_bf16_f32 v{O+2*r}, v{ACC+r}, v{ACC+4+r}')
        for r in range(4):
            k(f'v_cvt_pk_bf16_f32 v{O+2*r+1}, v{ACC+8+r}, v{ACC+12+r}')
        self.lstore([f'buffer_store_dwordx2 v[{O+2*r}:{O+2*r+1}], v13, s[{SWS}:{SWS+3}], s{[39,53,54,55][r]} offen @' for r in range(4)])

    def twave(self):
        k = self.k
        Q, CB, S, PF, ACC = 16, 80, 144, 152, 168
        k.srd(SGEN, PTR['ckv'], SIZES['ckv'])
        k(f's_lshl_b32 s52, s{sP}, 17')
        k('s_lshl_b32 s53, s3, 15')
        k('s_add_u32 s56, s52, s53')
        k(f's_mul_i32 s53, s3, {32*RS}')
        k(f's_add_u32 s53, s53, {CKV}')
        k('s_mov_b32 m0, s53')
        k('s_barrier')
        self.nonce()
        self.ldswait(FLG + 20, 1)
        self.stamp(1)
        for n in range(32):
            k(f'buffer_load_dwordx4 v2, s[{SGEN}:{SGEN+3}], s56 offen {self.ntckv} lds')
            if n < 31:
                k(f's_add_u32 m0, m0, {RS}')
                k('s_add_u32 s56, s56, 1024')
                if n + 1 >= self.depth:
                    k(f's_waitcnt vmcnt({self.depth-1})')
            if n == self.n0:
                lab = k.newlabel('Lb')
                k('s_cmp_eq_u32 s3, 0')
                k(f's_cbranch_scc0 {lab}')
                self.ldsinc(FLG + 8)
                k.label(lab)
                self.stamp(8)
        self.getloc()
        k('v_and_b32 v4, 15, v1')
        k(f'v_mul_u32_u24 v6, {RS}, v4')
        k('v_and_b32 v5, 48, v1')
        k('v_add_u32 v7, v6, v5')
        k('v_add_u32 v6, s53, v7')
        k(f'v_lshlrev_b32 v8, 2, v4')
        self.pvaddr()
        k('s_lshl_b32 s54, s3, 10')
        k('v_add_u32 v12, s54, v2')
        self.stamp(2)
        k('s_barrier')
        self.stamp(3)
        for t in range(16):
            k(f'ds_read_b128 v[{Q+4*t}:{Q+4*t+3}], v7 offset:{QL+64*t}')
            if t == 11: k('s_waitcnt lgkmcnt(4)')
        k('s_waitcnt lgkmcnt(6)')
        for tile in range(2):
            k(f's_waitcnt vmcnt({16 if tile == 0 else 0})')
            if tile == 1: self.stamp(4)
            for t in range(8):
                k(f'ds_read_b128 v[{CB+4*t}:{CB+4*t+3}], v6 offset:{64*t + tile*16*RS}')
            for t in range(16):
                if t < 8:
                    k(f'ds_read_b128 v[{CB+4*(t+8)}:{CB+4*(t+8)+3}], v6 offset:{64*(t+8) + tile*16*RS}')
                    k('s_waitcnt lgkmcnt(8)')
                else:
                    k(f's_waitcnt lgkmcnt({15-t})')
                c = '0' if t == 0 else f'v[{S+4*tile}:{S+4*tile+3}]'
                k(f'v_mfma_f32_16x16x32_bf16 v[{S+4*tile}:{S+4*tile+3}], v[{CB+4*t}:{CB+4*t+3}], v[{Q+4*t}:{Q+4*t+3}], {c}')
        k(f'v_max3_f32 v4, v{S}, v{S+1}, v{S+2}')
        k(f'v_max3_f32 v4, v4, v{S+3}, v{S+4}')
        k(f'v_max3_f32 v4, v4, v{S+5}, v{S+6}')
        k(f'v_max_f32 v4, v4, v{S+7}')
        k(f'ds_max_f32 v8, v4 offset:{MX}')
        k('s_waitcnt lgkmcnt(0)')
        self.stamp(5)
        k('s_barrier')
        k(f'ds_read_b32 v4, v8 offset:{MX}')
        for i in range(6): self.trread(16, i)
        cs = 128 ** -0.5 * LOG2E
        k(f's_mov_b32 s54, {f32(cs)}')
        k('s_waitcnt lgkmcnt(12)')
        k('v_mul_f32 v4, s54, v4')
        for e in range(8):
            k(f'v_fma_f32 v{S+e}, v{S+e}, s54, -v4')
        for e in range(8):
            k(f'v_exp_f32 v{S+e}, v{S+e}')
        for e in range(4):
            k(f'v_cvt_pk_bf16_f32 v{S+e}, v{S+2*e}, v{S+2*e+1}')
        k(f'ds_write_b128 v12, v[{S}:{S+3}] offset:{PL}')
        k('s_waitcnt lgkmcnt(0)')
        k('s_barrier')
        self.stamp(6)
        self.pv(16, 6)
        self.stamp(7)
        k('s_branch L_x3a')

    def load64(self, W, rowoff, n0=0, n1=16):
        k = self.k
        for n in range(n0, n1):
            if n - n0 >= self.tailwin: k(f's_waitcnt vmcnt({self.tailwin-1})')
            k(f's_add_u32 s53, s58, {rowoff(n)}')
            k(f'buffer_load_dwordx4 v[{W+4*n}:{W+4*n+3}], v11, s[{SGEN}:{SGEN+3}], s53 offen {self.nt}')

    def hwaves(self):
        k = self.k
        W, B, D, A = 16, 80, 144, 176
        k('s_cmp_eq_u32 s3, 4')
        k('s_cbranch_scc0 L_not4')
        k('s_barrier')
        self.stamp(1)
        k(f's_mov_b32 s58, {X1}')
        k.label('L_phA')
        k(f's_lshl_b32 s52, s{sH}, 3')
        k(f's_add_u32 s52, s52, s{sJ}')
        k('s_lshl_b32 s52, s52, 10')
        k('s_add_u32 s58, s58, s52')
        self.phaseA()
        k('s_branch L_gq')
        k.label('L_not4')
        k('s_cmp_eq_u32 s3, 5')
        k('s_cbranch_scc1 L_w5')
        k('s_cmp_eq_u32 s3, 7')
        k('s_cbranch_scc1 L_w7')
        k('s_cmp_eq_u32 s3, 6')
        k('s_cbranch_scc0 L_tw')
        k('s_barrier')
        self.layernorm()
        k(f's_cmp_ge_u32 s{sH}, 27')
        k('s_cbranch_scc1 L_w6skip')
        k('v_lshrrev_b32 v4, 4, v1')
        k(f'v_mul_u32_u24 v4, {20*3456}, v4')
        k('v_and_b32 v5, 7, v1')
        k('v_lshl_add_u32 v4, v5, 4, v4')
        k(f's_mul_i32 s52, s{sJ}, {80*3456}')
        k(f's_lshl_b32 s53, s{sH}, 7')
        k('s_add_u32 s52, s52, s53')
        k('v_add_u32 v4, s52, v4')
        k('v_mov_b32 v5, 0')
        k('s_mov_b32 s54, 0xff00ff00')
        k('s_mov_b32 s55, 0xff00ff00')
        k(f'v_mov_b32 v6, s{PTR["wg"]}')
        k(f'v_mov_b32 v7, s{PTR["wu"]}')
        k('v_cndmask_b32 v8, v6, v7, s[54:55]')
        k(f'v_mov_b32 v6, s{PTR["wg"]+1}')
        k(f'v_mov_b32 v7, s{PTR["wu"]+1}')
        k('v_cndmask_b32 v9, v6, v7, s[54:55]')
        k('v_lshl_add_u64 v[8:9], v[4:5], 0, v[8:9]')
        k('s_mov_b32 s56, 3456')
        k('s_mov_b32 s57, 0')
        self.ldswait(FLG + 16, 1)
        for n in range(20):
            k(f'global_load_dwordx4 v[{36+4*n}:{36+4*n+3}], v[8:9], off {self.nt}')
            if n < 19:
                k('v_lshl_add_u64 v[8:9], v[8:9], 0, s[56:57]')
        self.stamp(1)
        k(f's_mov_b32 s58, {XF}')
        k('s_branch L_phA')
        k.label('L_w6skip')
        self.nonce()
        k('s_branch L_gq')
        k.label('L_w5')
        self.phaseB()
        k('s_branch L_gq')
        k.label('L_w7')
        self.placement()
        k.label('L_gq')
        k('s_cmp_eq_u32 s3, 4')
        k('s_cbranch_scc0 L_t56')
        k.srd(SGEN, PTR['wuv'], SIZES['wuv'])
        k('v_bfe_u32 v4, v1, 4, 1')
        k('v_lshlrev_b32 v4, 16, v4')
        k('v_lshrrev_b32 v5, 5, v1')
        k('v_lshl_add_u32 v4, v5, 13, v4')
        k('v_and_b32 v5, 15, v1')
        k('v_lshl_add_u32 v11, v5, 4, v4')
        k(f's_lshl_b32 s52, s{sJ}, 19')
        k(f's_lshl_b32 s53, s{sH}, 8')
        k('s_add_u32 s58, s52, s53')
        uvrow = lambda n: (16 * (n & 3) + 2 * (n >> 2)) * 8192
        if self.uv == 0: self.load64(W, uvrow)
        k('s_branch L_gq2')
        k.label('L_t56')
        k('s_sub_u32 s54, s3, 5')
        k(f's_lshl_b32 s52, s{sH}, 1')
        k('s_add_u32 s52, s52, s54')
        k(f's_mov_b32 s55, s{sJ}')
        k.srd(SGEN, PTR['wo'], SIZES['wo'])
        k(f's_cmp_lt_u32 s{sJ}, 5')
        k('s_cbranch_scc1 L_tld')
        k(f's_mov_b32 s52, s{sH}')
        k(f's_sub_u32 s55, s{sJ}, 5')
        k('s_lshl_b32 s55, s55, 1')
        k('s_add_u32 s55, s55, s54')
        k.srd(SGEN, PTR['wd'], SIZES['wd'])
        k('s_cmp_lt_u32 s55, 5')
        k('s_cselect_b32 s52, s52, 64')
        k.label('L_tld')
        k('s_mov_b32 s37, s52')
        k('s_mov_b32 s38, s55')
        k(f's_mul_i32 s52, s52, {64*1280}')
        k('s_lshl_b32 s53, s55, 8')
        k('s_add_u32 s58, s52, s53')
        k('v_lshrrev_b32 v4, 4, v1')
        k(f'v_mul_u32_u24 v4, {16*1280}, v4')
        k('v_and_b32 v5, 15, v1')
        k('v_lshl_add_u32 v11, v5, 4, v4')
        if self.tail == 0:
            k('s_cmp_eq_u32 s3, 7')
            k('s_cbranch_scc1 L_gq2')
            self.load64(W, lambda n: n * 1280, 0, 16 - self.wo_late)
        k.label('L_gq2')
        self.pvaddr()
        self.gatherQ()
        k('s_barrier')
        self.stamp(9)
        k('s_cmp_eq_u32 s3, 7')
        k('s_cbranch_scc1 L_hb2')
        k('s_cmp_eq_u32 s3, 4')
        k('s_cbranch_scc0 L_hb1')
        if self.uv == 1: self.load64(W, uvrow)
        k('s_branch L_hb2')
        k.label('L_hb1')
        if self.tail == 1: self.load64(W, lambda n: n * 1280, 0, 16 - self.wo_late)
        k.label('L_hb2')
        self.getloc()
        k('v_and_b32 v4, 15, v1')
        k('v_lshlrev_b32 v6, 2, v4')
        k('v_lshlrev_b32 v12, 8, v4')
        k(f's_lshl_b32 s52, s{sGRP}, 1')
        k(f's_add_u32 s52, s52, s{sG2}')
        k('s_lshl_b32 s52, s52, 12')
        k(f's_and_b32 s53, s{sP}, 15')
        k('s_lshl_b32 s53, s53, 4')
        k('s_add_u32 s52, s52, s53')
        k(f's_add_u32 s57, s52, {X3AS}')
        k('s_barrier')
        k(f'ds_read_b32 v8, v6 offset:{MX}')
        for i in range(16):
            if i >= 7: k('s_waitcnt lgkmcnt(12)')
            self.trread(144, i)
        k('s_waitcnt lgkmcnt(0)')
        k('s_barrier')
        self.pv(144, 16)
        self.stamp(7)
        k('s_cmp_eq_u32 s3, 7')
        k('s_cbranch_scc0 L_x3a')
        for i in range(4): k(f'v_mov_b32 v{20+i}, 0x3f803f80')
        k(f'v_mul_f32 v16, {f32(128 ** -0.5 * LOG2E)}, v8')
        k(f'v_mov_b32 v17, s{sN}')
        k(f'v_mov_b32 v19, s{sN}')
        for kb in range(4):
            c = '0' if kb == 0 else 'v[40:43]'
            k(f'v_mfma_f32_16x16x32_bf16 v[40:43], v[20:23], v[{208+4*kb}:{211+4*kb}], {c}')
        k('v_mov_b32 v18, v40')
        k('s_mov_b64 exec, 0xffff')
        self.lstore(f'buffer_store_dwordx4 v[16:19], v12, s[{SWS}:{SWS+3}], s57 offen @')
        k('s_mov_b64 exec, -1')
        k.label('L_x3a')
        self.x3a()
        k('s_cmp_lt_u32 s3, 4')
        k('s_cbranch_scc1 L_endE')
        k('s_cmp_eq_u32 s3, 7')
        k('s_cbranch_scc1 L_fin')
        k('s_cmp_eq_u32 s3, 4')
        k('s_cbranch_scc0 L_e')
        R = 192
        self.perm8(W, B)
        self.perm8(W + 32, B + 32)
        self.stamp(10)
        k('v_and_b32 v4, 7, v1')
        k('v_lshlrev_b32 v4, 8, v4')
        k('v_lshrrev_b32 v5, 4, v1')
        k('v_lshl_add_u32 v5, v5, 6, v4')
        k(f's_lshl_b32 s52, s{sH}, 3')
        k(f's_add_u32 s52, s52, s{sJ}')
        k('s_lshl_b32 s53, s52, 10')
        k(f's_add_u32 s53, s53, {X4}')
        k('s_lshl_b32 s52, s52, 11')
        k(f's_add_u32 s52, s52, {X3B}')
        k('v_and_b32 v6, 7, v1')
        k('v_lshlrev_b32 v6, 4, v6')
        k('v_bfe_u32 v7, v1, 3, 1')
        k('v_lshl_add_u32 v6, v7, 9, v6')
        k('v_lshrrev_b32 v7, 4, v1')
        k('v_lshl_add_u32 v6, v7, 7, v6')
        self.mpoll(4, lambda q: k(f'buffer_load_dwordx4 v[{R+4*q}:{R+4*q+3}], v5, s[{SWS}:{SWS+3}], s52 offen offset:{16*q} sc1'),
                   lambda q, m: k(f'v_cmp_ne_u32 {m}, s{sN}, v{R+4*q+3}'))
        self.stamp(13)
        k(f'v_mov_b32 v{R+2}, v{R+4}')
        k(f'v_mov_b32 v{R+3}, v{R+5}')
        k(f'v_mov_b32 v{R+10}, v{R+12}')
        k(f'v_mov_b32 v{R+11}, v{R+13}')
        k(f'v_max_f32_dpp v8, v{R+6}, v{R+6} quad_perm:[1,0,3,2] {DPP}')
        self.mfma64(B, (R, R + 8), D, wait=False)
        k(f'v_max_f32_dpp v8, v8, v8 quad_perm:[2,3,0,1] {DPP}')
        k(f'v_sub_f32 v8, v{R+6}, v8')
        k('v_exp_f32 v8, v8')
        k(f'v_add_f32_dpp v9, v8, v8 quad_perm:[1,0,3,2] {DPP}')
        k(f'v_add_f32_dpp v9, v9, v9 quad_perm:[2,3,0,1] {DPP}')
        k('v_rcp_f32 v9, v9')
        k('v_mul_f32 v8, v8, v9')
        for r in range(4):
            k(f'v_mov_b32_dpp v{A+r}, v8 row_newbcast:{r} row_mask:0x5 bank_mask:0xf')
        for r in range(4):
            k(f'v_mov_b32_dpp v{A+r}, v8 row_newbcast:{4+r} row_mask:0xa bank_mask:0xf')
        for t in range(8):
            k(f'v_pk_mul_f32 v[{D+4*t}:{D+4*t+1}], v[{D+4*t}:{D+4*t+1}], v[{A}:{A+1}]')
        for t in range(8):
            k(f'v_pk_fma_f32 v[{D+4*t}:{D+4*t+1}], v[{D+4*t+2}:{D+4*t+3}], v[{A+2}:{A+3}], v[{D+4*t}:{D+4*t+1}]')
        for t in range(8):
            k(f'v_add_f32 v{D+4*t}, v{D+4*t}, v{D+4*t+1}')
        self.publish(D, 12, 6, 53, True)
        self.end()
        k.label('L_e')
        G = 192
        if self.wo_late:
            self.load64(W, lambda n: n * 1280, 16 - self.wo_late, 16)
        k('s_waitcnt vmcnt(8)')
        self.perm8(W, B)
        k('s_waitcnt vmcnt(0)')
        self.perm8(W + 32, B + 32)
        self.stamp(10)
        k('s_sub_u32 s54, s3, 5')
        k('s_lshl_b32 s55, s54, 9')
        k(f's_add_u32 s57, s55, {ACT}')
        k('v_bfe_u32 v4, v1, 2, 1')
        k('v_lshlrev_b32 v4, 8, v4')
        k('v_lshrrev_b32 v5, 4, v1')
        k('v_lshl_add_u32 v4, v5, 5, v4')
        k('v_add_u32 v10, s57, v4')
        k(f's_lshl_b32 s52, s{sH}, 13')
        k(f's_cmp_lt_u32 s{sJ}, 5')
        k('s_cbranch_scc1 L_e1')
        k(f's_cmp_ge_u32 s37, {0 if self.nof1 else 27}')
        k('s_cbranch_scc1 L_endE')
        k(f's_add_u32 s52, s52, {XF}')
        self.gather8(2, 52, G)
        for r in range(4): self.rbf(G + r)
        for r in range(4):
            k(f'v_mul_f32 v{G+4+r}, v{G+r}, v{G+r}')
        k(f's_mov_b32 s54, {f32(0.044715)}')
        for r in range(4):
            k(f'v_fma_f32 v{G+4+r}, v{G+4+r}, s54, 1.0')
        for r in range(4):
            k(f'v_mul_f32 v{G+4+r}, v{G+4+r}, v{G+r}')
        for r in range(4):
            k(f'v_mul_f32 v{G+4+r}, {f32(-2*math.sqrt(2/math.pi)*LOG2E)}, v{G+4+r}')
        for r in range(4):
            k(f'v_exp_f32 v{G+4+r}, v{G+4+r}')
        for r in range(4):
            k(f'v_add_f32 v{G+4+r}, 1.0, v{G+4+r}')
        for r in range(4):
            k(f'v_rcp_f32 v{G+4+r}, v{G+4+r}')
        for r in range(4):
            k(f'v_mul_f32 v{G+4+r}, v{G+4+r}, v{G+r}')
        for r in range(4): self.rbf(G + 4 + r)
        for r in range(4):
            k(f'v_mul_f32_dpp v{G+4+r}, v{G+r}, v{G+4+r} row_ror:8 {DPP}')
        k('s_lshl_b32 s53, s38, 5')
        k('s_add_u32 s53, s53, s37')
        k('s_lshl_b32 s53, s53, 10')
        k(f's_add_u32 s56, s53, {X5Y}')
        self.stamp(14)
        self.act_to_lds(G + 4, 's57')
        k('s_branch L_e2')
        k.label('L_e1')
        k(f's_add_u32 s52, s52, {X4}')
        k('s_add_u32 s52, s52, s55')
        k('s_add_u32 s53, s52, 4096')
        k('v_and_b32 v5, 31, v1')
        k('v_lshlrev_b32 v5, 4, v5')
        k('v_lshrrev_b32 v6, 5, v1')
        k('v_lshl_add_u32 v5, v6, 10, v5')
        k('v_and_b32 v7, 7, v1')
        k('v_lshlrev_b32 v7, 4, v7')
        k('v_lshl_add_u32 v7, v6, 2, v7')
        k('v_bfe_u32 v6, v1, 3, 1')
        k('v_lshl_add_u32 v7, v6, 8, v7')
        k('v_bfe_u32 v6, v1, 4, 1')
        k('v_lshl_add_u32 v7, v6, 3, v7')
        k('v_add_u32 v7, s57, v7')
        k('s_lshl_b32 s54, s38, 6')
        k('s_add_u32 s54, s54, s37')
        k('s_lshl_b32 s54, s54, 10')
        k(f's_add_u32 s56, s54, {X5S}')
        self.mpoll(4, lambda q: k(f'buffer_load_dwordx4 v[{G+4*q}:{G+4*q+3}], v5, s[{SWS}:{SWS+3}], s{52+(q>>1)} offen offset:{(q&1)*2048} sc1'), self.untag(G))
        self.stamp(13)
        self.treeadd(G, 16)
        for e in range(2):
            k(f'v_permlane32_swap_b32 v{G+e}, v{G+2+e}')
        k(f'v_pk_add_f32 v[{G}:{G+1}], v[{G}:{G+1}], v[{G+2}:{G+3}]')
        k(f'v_cvt_pk_bf16_f32 v{G}, v{G}, v{G+1}')
        k(f'ds_write_b32 v7, v{G}')
        k.label('L_e2')
        k('s_waitcnt lgkmcnt(0)')
        k(f'ds_read_b128 v[{A}:{A+3}], v10')
        k(f'ds_read_b128 v[{A+4}:{A+7}], v10 offset:16')
        self.mfma64(B, (A, A + 4), D)
        self.publish(D, 12, 2, 56, False)
        k.label('L_endE')
        self.end()
        k.label('L_fin')
        k(f's_cmp_lt_u32 s{sJ}, 5')
        k('s_cbranch_scc1 L_endF')
        k(f's_sub_u32 s52, s{sJ}, 5')
        k('s_lshl_b32 s52, s52, 5')
        k(f's_add_u32 s37, s52, s{sH}')
        k('s_cmp_ge_u32 s37, 80')
        k('s_cbranch_scc1 L_endF')
        k('s_lshr_b32 s38, s37, 4')
        k('s_and_b32 s39, s37, 15')
        k('s_bfe_u32 s52, s39, 0x10002')
        k('s_mul_i32 s52, s52, 640')
        k('s_lshl_b32 s53, s38, 7')
        k('s_add_u32 s52, s52, s53')
        k('s_and_b32 s53, s39, 3')
        k('s_lshl_b32 s53, s53, 5')
        k('s_add_u32 s52, s52, s53')
        k('s_lshr_b32 s53, s39, 3')
        k('s_lshl_b32 s53, s53, 2')
        k('s_add_u32 s52, s52, s53')
        k('v_and_b32 v4, 3, v1')
        k('v_lshrrev_b32 v5, 4, v1')
        k('v_lshl_add_u32 v10, v4, 3, v5')
        k('v_add_lshl_u32 v10, v10, s52, 1')
        k(f'buffer_load_ushort v11, v10, s[{SX}:{SX+3}], 0 offen')
        k('v_lshrrev_b32 v5, 2, v1')
        k('v_lshlrev_b32 v5, 10, v5')
        k('v_lshl_add_u32 v5, v4, 4, v5')
        k('s_lshl_b32 s54, s39, 6')
        k('s_lshl_b32 s52, s38, 15')
        k('s_add_u32 s52, s52, s54')
        k(f's_add_u32 s52, s52, {X5Y}')
        k('s_add_u32 s53, s52, 16384')
        Y, Z = 16, 32
        for i in range(4): k(f'v_mov_b32 v{Y+4+i}, 0')
        def m44(r):
            k(f's_mov_b32 s{r}, -1')
            k(f's_mov_b32 s{r+1}, 0xfff')
        self.mpoll(2, lambda p: k(f'buffer_load_dwordx4 v[{Y+4*p}:{Y+4*p+3}], v5, s[{SWS}:{SWS+3}], s{52+p} offen sc1'), self.untag(Y),
                   init=lambda p: m44 if p == 1 else None)
        def red4(R_):
            for e in range(2):
                k(f'v_permlane32_swap_b32 v{R_+e}, v{R_+2+e}')
            k(f'v_pk_add_f32 v[{R_}:{R_+1}], v[{R_}:{R_+1}], v[{R_+2}:{R_+3}]')
            k(f'v_permlane16_swap_b32 v{R_}, v{R_+1}')
            k(f'v_add_f32 v{R_}, v{R_}, v{R_+1}')
            for ror in (8, 4):
                k(f'v_add_f32_dpp v{R_}, v{R_}, v{R_} row_ror:{ror} {DPP}')
        self.treeadd(Y, 8)
        red4(Y)
        self.rbf(Y)
        k(f'v_mul_f32 v{Y+1}, {f32(-LOG2E)}, v{Y}')
        k(f'v_exp_f32 v{Y+1}, v{Y+1}')
        k(f'v_add_f32 v{Y+1}, 1.0, v{Y+1}')
        k(f'v_rcp_f32 v{Y+1}, v{Y+1}')
        k(f'v_mul_f32 v{Y}, v{Y}, v{Y+1}')
        self.rbf(Y)
        k('v_lshlrev_b32 v11, 16, v11')
        self.stamp(13)
        k('s_lshl_b32 s52, s38, 16')
        k('s_add_u32 s52, s52, s54')
        k(f's_add_u32 s52, s52, {X5S}')
        k('s_add_u32 s53, s52, 16384')
        k('s_add_u32 s54, s53, 16384')
        k('s_add_u32 s55, s54, 16384')
        k.srd(SGEN, PTR['out'], SIZES['out'])
        self.mpoll(4, lambda p: k(f'buffer_load_dwordx4 v[{Z+4*p}:{Z+4*p+3}], v5, s[{SWS}:{SWS+3}], s{52+p} offen sc1'), self.untag(Z))
        self.stamp(14)
        self.treeadd(Z, 16)
        red4(Z)
        self.rbf(Z)
        k(f'v_mul_f32 v{Z}, v{Z}, v{Y}')
        self.rbf(Z)
        k(f'v_add_f32 v{Z}, v{Z}, v11')
        k(f'v_cvt_pk_bf16_f32 v{Z}, v{Z}, v{Z}')
        k('s_mov_b32 exec_lo, 0x000f000f')
        k('s_mov_b32 exec_hi, 0x000f000f')
        k(f'buffer_store_short v{Z}, v10, s[{SGEN}:{SGEN+3}], 0 offen')
        k('s_cmp_eq_u32 s37, 0')
        k('s_cbranch_scc0 L_endF')
        k('s_mov_b64 exec, 1')
        k(f'v_mov_b32 v4, s{sN}')
        k(f'v_mov_b32 v5, {EPOCH}')
        k(f'buffer_store_dword v4, v5, s[{SWS}:{SWS+3}], 0 offen sc1')
        k.label('L_endF')
        self.end()

    def build(self):
        k = self.k
        k.label('L_codestart')
        self.prologue()
        self.hwaves()
        k.label('L_tw')
        self.twave()
        if self.stamps: self.stampout()
        k.label('L_exit')
        k('s_endpgm')
        k.label('L_codeend')
        k.lines = fix_hazards(k.lines)
        return module([k], [(KNAME, 256, 512, LDS_BYTES)])

if __name__ == '__main__':
    out = sys.argv[1]
    kw = {}
    for a_ in sys.argv[2:]:
        n, val = a_.split('=')
        kw[n] = int(val) if val.lstrip('-').isdigit() else val
    open(out, 'w').write(Gen(**kw).build())
```

```python
import sys, math
sys.path.insert(0, 'gen')
from asm import *

EPOCH = 0
X1  = 0x010000
XF  = 0x050000
X4  = 0x090000
DUAL = 0x0C0000
X2  = 0x190000
X3S = 0x1B0000
X5S = 0x1C0000
X5Y = 0x210000
X3  = 0x300000
STAMP = 0x700000
WS_SIZE = 0x800000
NW = 8

RS = 1056
PL = 0
MX = PL + 4096
FLG = MX + 256
F_A, F_Q, F_F1, F_T, F_XN, F_S1, F_S4 = [FLG + 4 * i for i in range(7)]
ACT = FLG + 256
XN = ACT + 1024
QL = 6144
OH = QL
CKV = QL + 16 * RS
assert CKV % 256 == 0 and CKV + 128 * RS <= 160 * 1024
LDS_BYTES = 160 * 1024

PTR = dict(x=4, ckv=6, wq=8, wuk=10, wuv=12, wo=14, bx=16, wg=18, wu=20, wd=22, out=24, dbg=26, ws=28)
sN, sH, sJ, sP, sG2, sB, sHJ = 30, 31, 32, 33, 34, 35, 36
SWS, SGEN, SX = 40, 44, 48
sMHI = 60
sSELLO, sSELHI, sMFF, sMHI16, sCNT, sLSB, sTAG, sGRP = 62, 63, 64, 65, 66, 67, 68, 69
sMASK = 70
sSTAMP = 86
SPIN = 1 << 18
LOG2E = 1.4426950408889634
CS = 128 ** -0.5 * LOG2E

def f32(x):
    import struct
    return '0x%08x' % struct.unpack('<I', struct.pack('<f', x))[0]

DPP = 'row_mask:0xf bank_mask:0xf'
WSR = f's[{SWS}:{SWS+3}]'
GEN = f's[{SGEN}:{SGEN+3}]'

class Gen:
    def __init__(self, stamps=0, nt='', ntckv='', depth=9, n0=20, pref=1, slp=1, ftrig=12, ttrig=-1,
                 hprio=1, k1=6, k4=24, wukw=-1, wo1=4, wo2=12, fack=1):
        self.k = K(KNAME, vgpr=256)
        self.__dict__.update(locals())

    def stamp(self, i):
        if self.stamps:
            self.k(f's_memrealtime s[{sSTAMP}:{sSTAMP+1}]')
            self.k('s_waitcnt lgkmcnt(0)')
            self.k(f'v_writelane_b32 v254, s{sSTAMP}, {i}')

    def end(self):
        self.k('s_branch L_stampout' if self.stamps else 's_endpgm')

    def stampout(self):
        k = self.k
        k.label('L_stampout')
        self.stamp(15)
        k(f'v_writelane_b32 v254, s{sSTAMP+2}, 0')
        k('s_mov_b64 exec, 0xffff')
        k(f's_lshl_b32 s52, s2, 3')
        k(f's_add_u32 s52, s52, s3')
        k(f's_lshl_b32 s52, s52, 6')
        k(f's_add_u32 s52, s52, {STAMP}')
        k('v_lshlrev_b32 v1, 2, v1')
        k(f'buffer_store_dword v254, v1, {WSR}, s52 offen')
        k('s_endpgm')

    def mpoll(self, n, load, check, pre=None, mask=None, after_issue=None, issued=False, group8=False):
        k = self.k
        lp, ld = k.newlabel('Lp'), k.newlabel('Ld')
        k(f's_mov_b32 s{sCNT}, {SPIN}')
        def issue():
            if pre: pre()
            for p in range(n):
                if mask and mask(p):
                    k(f's_mov_b64 s[{sMASK}:{sMASK+1}], exec')
                    k(f's_and_b32 exec_hi, exec_hi, {mask(p)}')
                load(p)
                if mask and mask(p): k(f's_mov_b64 exec, s[{sMASK}:{sMASK+1}]')
        if not issued: issue()
        if after_issue: after_issue()
        if issued: k(f's_waitcnt vmcnt({issued})')
        k.label(lp)
        for p in range(n):
            if not issued: k(f's_waitcnt vmcnt({n-1-p})')
            check(p, 4, p == 0)
        k('v_cmp_ne_u32 vcc, 0, v4')
        if group8:
            k('s_and_b64 vcc, exec, vcc')
            k(f's_cbranch_scc0 {ld}')
            k(f'v_or_b32_dpp v4, v4, v4 quad_perm:[1,0,3,2] {DPP}')
            k(f'v_or_b32_dpp v4, v4, v4 quad_perm:[2,3,0,1] {DPP}')
            k(f'v_or_b32_dpp v4, v4, v4 row_half_mirror {DPP}')
            k('v_cmp_ne_u32 vcc, 0, v4')
            k('s_and_b64 exec, exec, vcc')
        else:
            k('s_and_b64 exec, exec, vcc')
            k(f's_cbranch_scc0 {ld}')
        k(f's_sub_u32 s{sCNT}, s{sCNT}, 1')
        k(f's_cbranch_scc1 {ld}')
        issue()
        if issued: k('s_waitcnt vmcnt(0)')
        k(f's_branch {lp}')
        k.label(ld)
        k('s_mov_b64 exec, -1')

    def dualsel(self, sbase, tries, flag):
        k = self.k
        def pre():
            lab = k.newlabel('Lb')
            k(f's_cmp_eq_u32 s{sCNT}, {SPIN - tries}')
            k(f's_cbranch_scc0 {lab}')
            k(f's_mov_b64 s[{sMASK+2}:{sMASK+3}], exec')
            self.ldsinc(flag, 14)
            k(f's_mov_b64 exec, s[{sMASK+2}:{sMASK+3}]')
            k.label(lab)
            k(f's_cmp_gt_u32 s{sCNT}, {SPIN - tries}')
            k(f's_cselect_b32 s52, 0, {DUAL}')
            k(f's_add_u32 s52, s52, s{sbase}')
            k('s_add_u32 s53, s52, 4096')
        return pre

    def untag(self, D, n, tag=sTAG, last=None):
        k = self.k
        def check(p, acc, first):
            r = D + 4 * p
            for i in range(4):
                k(f'v_xor_b32 v{r+i}, s{tag}, v{r+i}')
            if first:
                k(f'v_or3_b32 v{acc}, v{r}, v{r+1}, v{r+2}')
                k(f'v_or_b32 v{acc}, v{acc}, v{r+3}')
            else:
                k(f'v_or3_b32 v{acc}, v{acc}, v{r}, v{r+1}')
                k(f'v_or3_b32 v{acc}, v{acc}, v{r+2}, v{r+3}')
            if p == n - 1: k(f'v_and_b32 v{acc}, {last or 0xff}, v{acc}')
        return check

    def gather8(self, D, pre=None, after_issue=None, issued=False):
        k = self.k
        self.mpoll(8, lambda p: k(f'buffer_load_dwordx4 v[{D+4*p}:{D+4*p+3}], v2, {WSR}, s{52+(p>>2)} offen offset:{(p&3)*1024} sc1'),
                   self.untag(D, 8), pre=pre, after_issue=after_issue, issued=issued)
        self.treeadd(D, 32)

    def treeadd(self, D, n):
        st = n // 2
        while st >= 4:
            for i in range(0, st, 2):
                self.k(f'v_pk_add_f32 v[{D+i}:{D+i+1}], v[{D+i}:{D+i+1}], v[{D+st+i}:{D+st+i+1}]')
            st //= 2

    def perm1(self, W, B, t, h):
        for n2 in range(h):
            self.k(f'v_perm_b32 v{B+t*h+n2}, v{W+(2*n2+1)*4+(t>>1)}, v{W+(2*n2)*4+(t>>1)}, s{sSELHI if t&1 else sSELLO}')

    def perm8(self, W, B, nrows=8):
        for t in range(8): self.perm1(W, B, t, nrows // 2)

    def ldswait(self, off, val, first=False):
        k = self.k
        lp = k.newlabel('Lw')
        k('v_mov_b32 v4, 0')
        k.label(lp)
        if self.slp and not first: k(f's_sleep {self.slp}')
        k(f'ds_read_b32 v5, v4 offset:{off}')
        k('s_waitcnt lgkmcnt(0)')
        k('v_readfirstlane_b32 s52, v5')
        k(f's_cmp_ge_u32 s52, {val}')
        k(f's_cbranch_scc0 {lp}')

    def ldsinc(self, off, t=5):
        k = self.k
        k('s_mov_b64 exec, 1')
        k('v_mov_b32 v4, 0')
        k(f'v_mov_b32 v{t}, 1')
        k(f'ds_add_u32 v4, v{t} offset:{off}')
        k('s_mov_b64 exec, -1')

    def ifwave(self, w, body):
        k = self.k
        lab = k.newlabel('Lb')
        k(f's_cmp_eq_u32 s3, {w}')
        k(f's_cbranch_scc0 {lab}')
        body()
        k.label(lab)

    def if56(self, body):
        k = self.k
        lab = k.newlabel('Lb')
        k('s_sub_u32 s52, s3, 5')
        k('s_cmp_lt_u32 s52, 2')
        k(f's_cbranch_scc0 {lab}')
        body()
        k.label(lab)

    def iff2(self, body):
        k = self.k
        lab = k.newlabel('Lb')
        k(f's_cmp_lt_u32 s{sJ}, 5')
        k(f's_cbranch_scc1 {lab}')
        k('s_cmp_ge_u32 s37, 27')
        k(f's_cbranch_scc1 {lab}')
        body()
        k.label(lab)

    def pubprep(self, D):
        k = self.k
        O = 12
        for t in range(4):
            k(f'v_cndmask_b32 v{O+t}, v{D+4*t}, v{D+4*(t+4)}, s[{sMHI}:{sMHI+1}]')
        for t in range(4):
            k(f'v_and_or_b32 v{O+t}, v{O+t}, s{sMFF}, v3')

    def pubstore(self, vaddr, soff, fl):
        self.k(f'buffer_store_dwordx4 v[12:15], v{vaddr}, {WSR}, s{soff} offen {fl}')

    def swapred(self, r, t, op):
        k = self.k
        for sw in ('v_permlane16_swap_b32', 'v_permlane32_swap_b32'):
            k(f'v_mov_b32 v{t}, v{r}')
            k(f'{sw} v{t}, v{r}')
            k(f'{op} v{r}, v{r}, v{t}')

    def red32(self, r, t, op='v_add_f32'):
        k = self.k
        k(f'{op}_dpp v{r}, v{r}, v{r} quad_perm:[1,0,3,2] {DPP}')
        k(f'{op}_dpp v{r}, v{r}, v{r} quad_perm:[2,3,0,1] {DPP}')
        k(f'{op}_dpp v{r}, v{r}, v{r} row_ror:8 {DPP}')
        self.swapred(r, t, op)

    def rbf(self, r):
        self.k(f'v_cvt_pk_bf16_f32 v{r}, v{r}, v{r}')
        self.k(f'v_and_b32 v{r}, s{sMHI16}, v{r}')

    def unpack(self, src, n, dst):
        for i in range(n):
            self.k(f'v_lshlrev_b32 v{dst+2*i}, 16, v{src+i}')
            self.k(f'v_and_b32 v{dst+2*i+1}, s{sMHI16}, v{src+i}')

    def nonce(self):
        k = self.k
        k('s_waitcnt lgkmcnt(0)')
        k(f's_add_u32 s{sN}, s{sN}, 1')
        k(f's_and_b32 s{sTAG}, s{sN}, 0xff')
        k(f's_and_b32 s{sLSB}, s{sN}, 0x00010001')
        k(f'v_mov_b32 v3, s{sTAG}')

    def prologue(self):
        k = self.k
        W = 36
        k('s_getpc_b64 s[38:39]')
        if self.stamps:
            k(f's_memrealtime s[{sSTAMP+2}:{sSTAMP+3}]')
            k('v_mov_b32 v254, 0')
        k('s_cmp_ge_u32 s2, 256')
        k('s_cbranch_scc1 L_exit')
        k('s_load_dwordx16 s[4:19], s[0:1], 0')
        k('s_load_dwordx2 s[28:29], s[0:1], 96')
        k('s_load_dwordx8 s[20:27], s[0:1], 64')
        k('v_lshrrev_b32 v4, 6, v0')
        k('v_and_b32 v1, 63, v0')
        k('v_readfirstlane_b32 s3, v4')
        k(f's_and_b32 s{sGRP}, s2, 7')
        k(f's_lshr_b32 s53, s2, 3')
        k(f's_and_b32 s54, s53, 3')
        k(f's_lshl_b32 s54, s54, 3')
        k(f's_add_u32 s{sH}, s54, s{sGRP}')
        k(f's_lshr_b32 s{sJ}, s53, 2')
        if self.pref:
            k('s_add_u32 s54, s54, s3')
            k('s_lshl_b32 s54, s54, 9')
            k('v_lshl_add_u32 v4, v1, 7, s54')
            k('v_min_u32 v4, L_codeend-L_codestart-8, v4')
            k('s_mov_b64 exec, 15')
            k('global_load_dword v255, v4, s[38:39]')
            k('s_mov_b64 exec, -1')
        k('s_cmp_eq_u32 s3, 7')
        k('s_cbranch_scc0 L_pro1')
        k('v_and_b32 v6, 3, v1')
        k('v_lshrrev_b32 v7, 3, v1')
        k('v_lshl_add_u32 v10, v7, 2, v6')
        k('v_bfe_u32 v7, v1, 2, 1')
        k('v_mul_u32_u24 v7, 1280, v7')
        k('v_mad_u32_u24 v6, v10, 40, v7')
        k('v_lshl_add_u32 v7, v10, 2, v7')
        k(f's_mul_i32 s55, s{sJ}, 160')
        k(f's_mov_b32 s{SX+2}, {SIZES["x"]}')
        k(f's_mov_b32 s{SX+3}, 0x00020000')
        k('s_waitcnt lgkmcnt(0)')
        k(f's_mov_b64 s[{SX}:{SX+1}], s[{PTR["x"]}:{PTR["x"]+1}]')
        k(f'buffer_load_dwordx4 v[12:15], v6, s[{SX}:{SX+3}], 0 offen')
        k(f'buffer_load_dwordx4 v[16:19], v6, s[{SX}:{SX+3}], 0 offen offset:16')
        k(f'buffer_load_dwordx2 v[20:21], v6, s[{SX}:{SX+3}], 0 offen offset:32')
        k(f'buffer_load_dword v22, v7, s[{SX}:{SX+3}], s55 offen')
        k(f'buffer_load_dword v23, v7, s[{SX}:{SX+3}], s55 offen offset:128')
        k.label('L_pro1')
        k('s_cmp_eq_u32 s3, 4')
        k('s_cbranch_scc0 L_pro2')
        k('v_lshrrev_b32 v4, 4, v1')
        k(f'v_mul_u32_u24 v4, {20*8192}, v4')
        k('v_and_b32 v5, 15, v1')
        k('v_lshl_add_u32 v4, v5, 4, v4')
        k(f's_mul_i32 s52, s{sJ}, {80*8192}')
        k(f's_lshl_b32 s54, s{sH}, 8')
        k('s_add_u32 s52, s52, s54')
        k(f's_mov_b32 s{SGEN+2}, {SIZES["wq"]}')
        k(f's_mov_b32 s{SGEN+3}, 0x00020000')
        k('s_movk_i32 s54, 8192')
        k('s_waitcnt lgkmcnt(0)')
        k(f's_mov_b64 s[{SGEN}:{SGEN+1}], s[{PTR["wq"]}:{PTR["wq"]+1}]')
        for n in range(20):
            k(f'buffer_load_dwordx4 v[{W+4*n}:{W+4*n+3}], v4, {GEN}, s52 offen {self.nt}')
            if n < 19: k('s_add_u32 s52, s52, s54')
        k.label('L_pro2')
        k('v_mov_b32 v11, 0')
        k('v_lshlrev_b32 v2, 4, v1')
        k(f's_and_b32 s{sG2}, s53, 1')
        k(f's_lshr_b32 s54, s53, 1')
        k(f's_lshl_b32 s55, s{sGRP}, 4')
        k(f's_add_u32 s{sP}, s54, s55')
        k(f's_lshr_b32 s{sB}, s{sP}, 6')
        k(f's_lshl_b32 s54, s{sH}, 3')
        k(f's_add_u32 s{sHJ}, s54, s{sJ}')
        k(f's_mov_b32 s{sMHI}, 0')
        k(f's_mov_b32 s{sMHI+1}, -1')
        k(f's_mov_b32 s{sSELLO}, 0x05040100')
        k(f's_mov_b32 s{sSELHI}, 0x07060302')
        k(f's_mov_b32 s{sMFF}, 0xffffff00')
        k(f's_mov_b32 s{sMHI16}, 0xffff0000')
        k('v_lshlrev_b32 v4, 2, v1')
        k(f'ds_write_b32 v4, v11 offset:{FLG}')
        k('v_mov_b32 v5, 0xff800000')
        k(f'ds_write_b32 v4, v5 offset:{MX}')
        k('s_waitcnt lgkmcnt(0)')
        k(f's_load_dword s{sN}, s[28:29], {EPOCH}')
        k.srd(SWS, PTR['ws'], WS_SIZE)
        k.srd(SX, PTR['x'], SIZES['x'])
        k('s_barrier')

    def layernorm(self):
        k = self.k
        XS, U, B = 12, 180, 116
        k('v_bfe_u32 v7, v1, 2, 1')
        k('v_lshlrev_b32 v7, 8, v7')
        k('v_lshl_add_u32 v10, v10, 2, v7')
        k(f'v_add_u32 v10, {XN}, v10')
        k('s_waitcnt vmcnt(2)')
        self.stamp(2)
        self.unpack(XS, 10, U)
        for i in range(0, 10, 2):
            k(f'v_pk_add_f32 v[{B+i}:{B+i+1}], v[{U+i}:{U+i+1}], v[{U+10+i}:{U+11+i}]')
        k(f'v_pk_add_f32 v[{B}:{B+1}], v[{B}:{B+1}], v[{B+2}:{B+3}]')
        k(f'v_pk_add_f32 v[{B+4}:{B+5}], v[{B+4}:{B+5}], v[{B+6}:{B+7}]')
        k(f'v_pk_add_f32 v[{B}:{B+1}], v[{B}:{B+1}], v[{B+8}:{B+9}]')
        k(f'v_pk_add_f32 v[{B}:{B+1}], v[{B}:{B+1}], v[{B+4}:{B+5}]')
        k(f'v_add_f32 v4, v{B}, v{B+1}')
        self.red32(4, 5)
        k(f'v_mul_f32 v4, {f32(-1/640)}, v4')
        for i in range(0, 20, 2):
            k(f'v_pk_add_f32 v[{U+i}:{U+i+1}], v[{U+i}:{U+i+1}], v[4:5] op_sel_hi:[1,0]')
        k(f'v_pk_mul_f32 v[6:7], v[{U}:{U+1}], v[{U}:{U+1}]')
        k(f'v_pk_mul_f32 v[{B}:{B+1}], v[{U+2}:{U+3}], v[{U+2}:{U+3}]')
        for i in range(4, 20, 4):
            k(f'v_pk_fma_f32 v[6:7], v[{U+i}:{U+i+1}], v[{U+i}:{U+i+1}], v[6:7]')
            k(f'v_pk_fma_f32 v[{B}:{B+1}], v[{U+i+2}:{U+i+3}], v[{U+i+2}:{U+i+3}], v[{B}:{B+1}]')
        k(f'v_pk_add_f32 v[6:7], v[6:7], v[{B}:{B+1}]')
        self.rbf(4)
        k('v_add_f32 v6, v6, v7')
        k('s_waitcnt vmcnt(0)')
        self.unpack(22, 2, U)
        k(f'v_add_f32_dpp v6, v6, v6 quad_perm:[1,0,3,2] {DPP}')
        for i in range(0, 4, 2):
            k(f'v_pk_add_f32 v[{U+i}:{U+i+1}], v[{U+i}:{U+i+1}], v[4:5] op_sel_hi:[1,0]')
        k(f'v_add_f32_dpp v6, v6, v6 quad_perm:[2,3,0,1] {DPP}')
        for i in range(2):
            k(f'v_cvt_pk_bf16_f32 v{22+i}, v{U+2*i}, v{U+2*i+1}')
        k(f'v_add_f32_dpp v6, v6, v6 row_ror:8 {DPP}')
        self.unpack(22, 2, U)
        self.swapred(6, 5, 'v_add_f32')
        k(f'v_mul_f32 v6, {f32(1/640)}, v6')
        self.rbf(6)
        k(f'v_add_f32 v6, {f32(1e-5)}, v6')
        self.rbf(6)
        k('v_sqrt_f32 v6, v6')
        self.rbf(6)
        k('v_rcp_f32 v6, v6')
        for i in range(0, 4, 2):
            k(f'v_pk_mul_f32 v[{U+i}:{U+i+1}], v[{U+i}:{U+i+1}], v[6:7] op_sel_hi:[1,0]')
        for i in range(2):
            k(f'v_cvt_pk_bf16_f32 v{22+i}, v{U+2*i}, v{U+2*i+1}')
        k(f'ds_write2_b32 v10, v22, v23 offset0:0 offset1:32')
        self.ldsinc(F_XN)
        self.stamp(3)

    def f1addr(self):
        k = self.k
        k('v_lshrrev_b32 v4, 4, v1')
        k(f'v_mul_u32_u24 v4, {20*3456}, v4')
        k('v_and_b32 v5, 7, v1')
        k('v_lshl_add_u32 v4, v5, 4, v4')
        k(f's_mul_i32 s52, s{sJ}, {80*3456}')
        k(f's_lshl_b32 s53, s{sH}, 7')
        k('s_add_u32 s52, s52, s53')
        k('v_add_u32 v4, s52, v4')
        k('v_mov_b32 v5, 0')
        k('s_mov_b32 s54, 0xff00ff00')
        k('s_mov_b32 s55, 0xff00ff00')
        k(f'v_mov_b32 v6, s{PTR["wg"]}')
        k(f'v_mov_b32 v7, s{PTR["wu"]}')
        k('v_cndmask_b32 v250, v6, v7, s[54:55]')
        k(f'v_mov_b32 v6, s{PTR["wg"]+1}')
        k(f'v_mov_b32 v7, s{PTR["wu"]+1}')
        k('v_cndmask_b32 v251, v6, v7, s[54:55]')
        k('v_lshl_add_u64 v[250:251], v[4:5], 0, v[250:251]')

    def f1loads(self):
        k = self.k
        k('s_mov_b32 s56, 3456')
        k('s_mov_b32 s57, 0')
        for n in range(20):
            k(f'global_load_dwordx4 v[{36+4*n}:{36+4*n+3}], v[250:251], off {self.nt}')
            if n < 19:
                k('v_lshl_add_u64 v[250:251], v[250:251], 0, s[56:57]')

    def phaseA(self):
        k = self.k
        XO, W, B, D = 24, 36, 116, 196
        def trig(cnt):
            fl = []
            if cnt == self.ftrig: fl.append(F_F1)
            if cnt + 100 == self.ttrig: fl.append(F_T)
            if fl: self.ifwave(4, lambda: [self.ldsinc(f) for f in fl])
        k(f's_lshl_b32 s52, s{sHJ}, 10')
        k('s_add_u32 s58, s58, s52')
        trig(20)
        k('v_bfe_u32 v6, v1, 2, 1')
        k('v_lshlrev_b32 v6, 8, v6')
        k('v_lshrrev_b32 v7, 4, v1')
        k('v_mad_u32_u24 v6, v7, 40, v6')
        k('s_waitcnt vmcnt(12)')
        trig(12)
        self.perm8(W, B)
        self.ldswait(F_XN, 1, first=True)
        for i in range(5):
            k(f'ds_read_b64 v[{XO+2*i}:{XO+2*i+1}], v6 offset:{XN+8*i}')
        k('s_waitcnt vmcnt(4)')
        trig(4)
        k('s_waitcnt lgkmcnt(0)')
        for t in range(8):
            k(f'v_mfma_f32_16x16x32_bf16 v[{D+4*t}:{D+4*t+3}], v[{XO}:{XO+3}], v[{B+4*t}:{B+4*t+3}], 0')
            self.perm1(W + 32, B + 32, t, 4)
        k('s_waitcnt vmcnt(0)')
        trig(0)
        self.stamp(4)
        for t in range(8):
            k(f'v_mfma_f32_16x16x32_bf16 v[{D+4*t}:{D+4*t+3}], v[{XO+4}:{XO+7}], v[{B+32+4*t}:{B+32+4*t+3}], v[{D+4*t}:{D+4*t+3}]')
            self.perm1(W + 64, B + 64, t, 2)
        for t in range(8):
            k(f'v_mfma_f32_16x16x16_bf16 v[{D+4*t}:{D+4*t+3}], v[{XO+8}:{XO+9}], v[{B+64+2*t}:{B+64+2*t+1}], v[{D+4*t}:{D+4*t+3}]')
        self.pubprep(D)
        def plain():
            self.pubstore(2, 58, '')
            self.ldsinc(F_A)
            if self.ttrig == -3: self.ldsinc(F_T)
            self.stamp(5)
            k(f's_add_u32 s58, s58, {DUAL}')
            self.ldswait(F_S1, 1)
        self.ifwave(4, plain)
        self.pubstore(2, 58, 'sc1')

    def phaseB(self):
        k = self.k
        W, G, D, A = 16, 80, 112, 128
        k.srd(SGEN, PTR['wuk'], SIZES['wuk'])
        k('v_and_b32 v4, 15, v1')
        k('v_lshlrev_b32 v4, 15, v4')
        k('v_and_b32 v5, 48, v1')
        k('v_add_u32 v4, v4, v5')
        k(f's_lshl_b32 s52, s{sHJ}, 10')
        k(f's_add_u32 s52, s52, {X1}')
        k(f'buffer_load_dwordx4 v[{G}:{G+3}], v2, {WSR}, s52 offen sc1')
        k(f's_lshl_b32 s52, s{sJ}, 19')
        k(f's_lshl_b32 s53, s{sH}, 8')
        k('s_add_u32 s52, s52, s53')
        for ct in range(4):
            for t in range(4):
                r = W + 16 * ct + 4 * t
                k(f'buffer_load_dwordx4 v[{r}:{r+3}], v4, {GEN}, s52 offen offset:{64*t} {self.nt}')
            if ct < 3: k('s_add_u32 s52, s52, 8192')
        self.stamp(1)
        self.nonce()
        if 0 <= self.ttrig < 100:
            k(f's_waitcnt vmcnt({self.ttrig})')
            self.ldsinc(F_T)
        k('v_and_b32 v6, 31, v1')
        k('v_lshlrev_b32 v6, 4, v6')
        k('v_lshrrev_b32 v5, 5, v1')
        k('v_lshl_add_u32 v6, v5, 3, v6')
        k('v_bfe_u32 v7, v1, 2, 1')
        k('v_lshlrev_b32 v7, 8, v7')
        k('v_and_b32 v5, 48, v1')
        k('v_add_u32 v7, v7, v5')
        k('v_and_b32 v12, 15, v1')
        k('v_lshlrev_b32 v12, 4, v12')
        k('v_bfe_u32 v5, v1, 4, 1')
        k('v_lshl_add_u32 v12, v5, 16, v12')
        k(f's_lshl_b32 s57, s{sHJ}, 8')
        k(f's_add_u32 s57, s57, {X2}')
        k(f's_and_b32 s53, s{sN}, 0xffff')
        k('v_mov_b32 v13, s53')
        k(f's_lshl_b32 s56, s{sH}, 13')
        k(f's_add_u32 s56, s56, {X1}')
        if self.wukw >= 0:
            k(f's_waitcnt vmcnt({self.wukw})')
            self.stamp(4)
        self.ldswait(F_A, 1, first=True)
        self.stamp(5)
        def aft():
            if self.ftrig == -1: self.ldsinc(F_F1)
            if self.ttrig == -1: self.ldsinc(F_T)
        self.gather8(G, self.dualsel(56, self.k1, F_S1), aft)
        self.ldsinc(F_S1)
        if self.ftrig == -2: self.ldsinc(F_F1)
        if self.ttrig == -2: self.ldsinc(F_T)
        self.stamp(2)
        k(f'v_cvt_pk_bf16_f32 v{G}, v{G}, v{G+1}')
        k(f'v_cvt_pk_bf16_f32 v{G+1}, v{G+2}, v{G+3}')
        k(f'ds_write_b64 v6, v[{G}:{G+1}] offset:{ACT}')
        for t in range(4):
            k(f'ds_read_b128 v[{A+4*t}:{A+4*t+3}], v7 offset:{ACT+64*t}')
        for t in range(4):
            k(f's_waitcnt lgkmcnt({3-t})')
            for ct in range(4):
                c = '0' if t == 0 else f'v[{D+4*ct}:{D+4*ct+3}]'
                r = W + 16 * ct + 4 * t
                k(f'v_mfma_f32_16x16x32_bf16 v[{D+4*ct}:{D+4*ct+3}], v[{A+4*t}:{A+4*t+3}], v[{r}:{r+3}], {c}')
        k(f'v_cvt_pk_bf16_f32 v9, v{D}, v{D+4}')
        k(f'v_cvt_pk_bf16_f32 v11, v{D+8}, v{D+12}')
        k('v_lshl_or_b32 v8, v9, 16, v13')
        k(f'v_and_or_b32 v9, v9, s{sMHI16}, v13')
        k('v_lshl_or_b32 v10, v11, 16, v13')
        k(f'v_and_or_b32 v11, v11, s{sMHI16}, v13')
        k('s_mov_b32 exec_hi, 0')
        k(f'buffer_store_dwordx4 v[8:11], v12, {WSR}, s57 offen sc1')
        self.ldsinc(F_Q)
        self.stamp(3)

    def gatherQ(self):
        k = self.k
        G = 192
        self.ldswait(F_Q, 2)
        k(f's_lshl_b32 s52, s{sB}, 16')
        k(f's_lshl_b32 s53, s{sG2}, 15')
        k('s_add_u32 s52, s52, s53')
        k('s_sub_u32 s54, s3, 4')
        k('s_lshl_b32 s53, s54, 13')
        k('s_add_u32 s52, s52, s53')
        k(f's_add_u32 s52, s52, {X2}')
        k('s_add_u32 s53, s52, 4096')
        def check(p, acc, first):
            r = G + 4 * p
            for i in range(4):
                if first and i == 0: k(f'v_xor_b32 v4, s{sN}, v{r}')
                else: k(f'v_bitop3_b32 v4, v4, v{r+i}, s{sN} bitop3:0xf6')
            if p == 7: k('v_and_b32 v4, 0xffff, v4')
        self.mpoll(8, lambda p: k(f'buffer_load_dwordx4 v[{G+4*p}:{G+4*p+3}], v2, {WSR}, s{52+(p>>2)} offen offset:{(p&3)*1024} sc1'), check)
        self.stamp(8)
        k(f's_mul_i32 s54, s54, {4*RS}')
        k('v_lshl_add_u32 v4, v1, 3, s54')
        for p in range(8):
            r = G + 4 * p
            k(f'v_perm_b32 v{r}, v{r+1}, v{r}, s{sSELHI}')
            k(f'v_perm_b32 v{r+1}, v{r+3}, v{r+2}, s{sSELHI}')
            k(f'ds_write_b64 v4, v[{r}:{r+1}] offset:{QL + (p>>1)*RS + (p&1)*512}')
        k('s_waitcnt lgkmcnt(0)')

    CT, PF, ACC = 144, 208, 224

    def pvaddr(self):
        k = self.k
        k('v_lshrrev_b32 v4, 2, v1')
        k(f'v_mul_u32_u24 v9, {RS}, v4')
        k('v_and_b32 v4, 3, v1')
        k('v_lshl_add_u32 v9, v4, 3, v9')
        k('s_lshl_b32 s54, s3, 7')
        k(f's_add_u32 s54, s54, {CKV}')
        k('v_add_u32 v9, s54, v9')
        k(f'v_add_u32 v10, {64*RS}, v9')
        k('v_and_b32 v4, 15, v1')
        k('v_lshlrev_b32 v4, 3, v4')
        k('v_lshrrev_b32 v13, 4, v1')
        k('v_lshl_add_u32 v13, v13, 19, v4')
        k(f's_lshl_b32 s52, s{sG2}, 21')
        k('s_lshl_b32 s54, s3, 14')
        k('s_add_u32 s52, s52, s54')
        k(f's_lshl_b32 s54, s{sP}, 7')
        k('s_add_u32 s52, s52, s54')
        k(f's_add_u32 s39, s52, {X3}')

    def trread(self, i, hf):
        ct, kb = i >> 2, i & 3
        r = self.CT + 16 * ct + 4 * kb + 2 * hf
        off = (32 * (kb & 1) + 16 * hf) * RS + 32 * ct
        self.k(f'ds_read_b64_tr_b16 v[{r}:{r+1}], v{9 if kb < 2 else 10} offset:{off}')

    def pv(self):
        k = self.k
        CT, PF, ACC, O = self.CT, self.PF, self.ACC, 240
        for kb in range(4):
            k(f'ds_read_b128 v[{PF+4*kb}:{PF+4*kb+3}], v2 offset:{PL+1024*kb}')
        k(f's_add_u32 s53, s39, {1<<17}')
        k(f's_add_u32 s54, s39, {2<<17}')
        k(f's_add_u32 s55, s39, {3<<17}')
        k(f'v_mov_b32 v4, s{sLSB}')
        k('s_mov_b32 s52, 0xfffefffe')
        for kb in range(4):
            k(f's_waitcnt lgkmcnt({3-kb})')
            for ct in range(4):
                c = '0' if kb == 0 else f'v[{ACC+4*ct}:{ACC+4*ct+3}]'
                r = CT + 16 * ct + 4 * kb
                k(f'v_mfma_f32_16x16x32_bf16 v[{ACC+4*ct}:{ACC+4*ct+3}], v[{PF+4*kb}:{PF+4*kb+3}], v[{r}:{r+3}], {c}')
        for r in range(4):
            k(f'v_cvt_pk_bf16_f32 v{O+2*r}, v{ACC+r}, v{ACC+4+r}')
        for r in range(4):
            k(f'v_and_or_b32 v{O+2*r}, v{O+2*r}, s52, v4')
        for r in range(4):
            k(f'v_cvt_pk_bf16_f32 v{O+2*r+1}, v{ACC+8+r}, v{ACC+12+r}')
            k(f'v_and_or_b32 v{O+2*r+1}, v{O+2*r+1}, s52, v4')
            k(f'buffer_store_dwordx2 v[{O+2*r}:{O+2*r+1}], v13, {WSR}, s{[39,53,54,55][r]} offen sc1')

    def x3(self, after_issue=None):
        k = self.k
        G, ST, U = 192, 200, 208
        def load(p):
            if p >= 2: k(f'buffer_load_dwordx4 v[{ST+4*(p-2)}:{ST+4*(p-2)+3}], v5, {WSR}, s{54+p-2} offen sc1')
            else: k(f'buffer_load_dwordx4 v[{G+4*p}:{G+4*p+3}], v2, {WSR}, s56 offen offset:{1024*p} sc1')
        dchk = self.untag(G, 2, sLSB, 0x00010001)
        def check(p, acc, first):
            if p < 2: dchk(p, acc, first)
            else:
                k(f'v_bitop3_b32 v4, v4, v{ST+4*(p-2)+1}, s{sN} bitop3:0xf6')
                k(f'v_bitop3_b32 v4, v4, v{ST+4*(p-2)+3}, s{sN} bitop3:0xf6')
        self.mpoll(4, load, check, after_issue=after_issue, group8=True)
        self.stamp(11)
        def unp(i):
            k(f'v_lshl_or_b32 v{U+2*i}, v{G+i}, 16, v7')
            k(f'v_and_or_b32 v{U+2*i+1}, v{G+i}, s{sMHI16}, v7')
        k(f'v_max_f32 v8, v{ST}, v{ST+4}')
        unp(0); unp(1)
        k(f'v_max_f32_dpp v8, v8, v8 row_ror:8 {DPP}')
        k('v_mov_b32 v9, v8')
        unp(2); unp(3)
        k('v_permlane16_swap_b32 v9, v8')
        k('v_max_f32 v8, v8, v9')
        k('v_mov_b32 v9, v8')
        unp(4); unp(5)
        k('v_permlane32_swap_b32 v9, v8')
        k('v_max_f32 v8, v8, v9')
        k(f'v_sub_f32 v{ST}, v{ST}, v8')
        k(f'v_sub_f32 v{ST+4}, v{ST+4}, v8')
        k(f'v_exp_f32 v{ST}, v{ST}')
        k(f'v_exp_f32 v{ST+4}, v{ST+4}')
        unp(6); unp(7)
        k(f'v_mul_f32 v10, v{ST}, v{ST+2}')
        k(f'v_fmac_f32 v10, v{ST+4}, v{ST+6}')
        for e in range(0, 8, 2):
            k(f'v_pk_mul_f32 v[{U+e}:{U+e+1}], v[{U+e}:{U+e+1}], v[{ST}:{ST+1}] op_sel_hi:[1,0]')
        k(f'v_add_f32_dpp v10, v10, v10 row_ror:8 {DPP}')
        for e in range(0, 8, 2):
            k(f'v_pk_fma_f32 v[{U+e}:{U+e+1}], v[{U+8+e}:{U+9+e}], v[{ST+4}:{ST+5}], v[{U+e}:{U+e+1}] op_sel_hi:[1,0,1]')
        k('v_mov_b32 v9, v10')
        for e in range(4):
            k(f'v_permlane32_swap_b32 v{U+e}, v{U+4+e}')
        k('v_permlane32_swap_b32 v9, v10')
        for e in range(0, 4, 2):
            k(f'v_pk_add_f32 v[{U+e}:{U+e+1}], v[{U+e}:{U+e+1}], v[{U+4+e}:{U+5+e}]')
        k('v_add_f32 v10, v10, v9')
        k('v_mov_b32 v9, v10')
        for e in range(2):
            k(f'v_permlane16_swap_b32 v{U+e}, v{U+2+e}')
        k('v_permlane16_swap_b32 v9, v10')
        k(f'v_pk_add_f32 v[{U}:{U+1}], v[{U}:{U+1}], v[{U+2}:{U+3}]')
        k('v_add_f32 v9, v10, v9')
        for e in range(2):
            k(f'v_add_f32_dpp v{U+e}, v{U+e}, v{U+e} row_ror:8 {DPP}')
        k(f'ds_write_b64 v12, v[8:9] offset:{OH+128}')
        k(f'v_cvt_pk_bf16_f32 v{U}, v{U}, v{U+1}')
        k(f'ds_write_b32 v6, v{U} offset:{OH}')
        k('s_waitcnt lgkmcnt(0)')

    def x3addr(self):
        k = self.k
        k(f's_lshl_b32 s56, s{sHJ}, 3')
        k('s_add_u32 s56, s56, s3')
        k('s_lshl_b32 s56, s56, 11')
        k(f's_add_u32 s56, s56, {X3}')
        k(f's_and_b32 s54, s{sH}, 16')
        k(f's_lshl_b32 s55, s{sGRP}, 1')
        k('s_add_u32 s54, s54, s55')
        k(f's_bfe_u32 s55, s{sH}, 0x10003')
        k('s_add_u32 s54, s54, s55')
        k('s_lshl_b32 s54, s54, 4')
        k('s_lshl_b32 s55, s3, 13')
        k('s_add_u32 s54, s54, s55')
        k(f's_add_u32 s54, s54, {X3S}')
        k('s_add_u32 s55, s54, 4096')
        k('v_lshrrev_b32 v5, 3, v1')
        k('v_lshlrev_b32 v5, 9, v5')
        k('v_mov_b32 v7, 0x8000')
        k('s_mul_i32 s52, s3, 144')
        k('v_mov_b32 v12, s52')
        k('v_and_b32 v6, 7, v1')
        k('v_lshl_add_u32 v6, v6, 4, v12')
        k('v_lshrrev_b32 v4, 4, v1')
        k('v_lshl_add_u32 v6, v4, 2, v6')

    def mfma64(self, B, A, D):
        k = self.k
        for st in range(2):
            k(f's_waitcnt lgkmcnt({1-st})')
            for t in range(8):
                c = '0' if st == 0 else f'v[{D+4*t}:{D+4*t+3}]'
                r = B + 32 * st + 4 * t
                k(f'v_mfma_f32_16x16x32_bf16 v[{D+4*t}:{D+4*t+3}], v[{A+4*st}:{A+4*st+3}], v[{r}:{r+3}], {c}')

    def twave(self):
        k = self.k
        Q, CB, S = 16, 80, 240
        k.srd(SGEN, PTR['ckv'], SIZES['ckv'])
        k(f's_lshl_b32 s52, s{sP}, 17')
        k('s_lshl_b32 s53, s3, 15')
        k('s_add_u32 s56, s52, s53')
        k(f's_mul_i32 s53, s3, {32*RS}')
        k(f's_add_u32 s53, s53, {CKV}')
        k('s_mov_b32 m0, s53')
        k('v_and_b32 v4, 15, v1')
        k(f'v_mul_u32_u24 v6, {RS}, v4')
        k('v_and_b32 v5, 48, v1')
        k('v_add_u32 v7, v6, v5')
        k('v_add_u32 v6, s53, v7')
        k(f'v_lshlrev_b32 v8, 2, v4')
        self.pvaddr()
        k('s_lshl_b32 s54, s3, 10')
        k('v_add_u32 v12, s54, v2')
        k(f's_movk_i32 s57, {RS}')
        k(f's_movk_i32 s58, 1024')
        self.nonce()
        self.ldswait(F_T, 1)
        self.stamp(1)
        for n in range(32):
            k(f'buffer_load_dwordx4 v2, {GEN}, s56 offen {self.ntckv} lds')
            if n < 31:
                k('s_add_u32 m0, m0, s57')
                k('s_add_u32 s56, s56, s58')
                if n + 1 >= self.depth:
                    k(f's_waitcnt vmcnt({self.depth-1})')
            if n == self.n0:
                self.ifwave(0, lambda: self.ldsinc(F_Q))
                self.stamp(8)
        assert self.depth <= 16
        self.stamp(2)
        k('s_barrier')
        self.stamp(3)
        for t in range(16):
            k(f'ds_read_b128 v[{Q+4*t}:{Q+4*t+3}], v7 offset:{QL+64*t}')
            if t == 11: k('s_waitcnt lgkmcnt(4)')
        k('s_waitcnt lgkmcnt(6)')
        for tile in range(2):
            if tile == 1:
                for i in range(16):
                    if i == 12: k('s_waitcnt lgkmcnt(8)')
                    self.trread(i, 0)
                k('s_waitcnt vmcnt(0) lgkmcnt(3)')
                self.stamp(4)
            nah = 8 if tile == 0 else 12
            for t in range(nah):
                k(f'ds_read_b128 v[{CB+4*t}:{CB+4*t+3}], v6 offset:{64*t + tile*16*RS}')
            for t in range(16):
                k(f's_waitcnt lgkmcnt({min(nah - 1, 15 - t)})')
                c = '0' if t == 0 else f'v[{S+4*tile}:{S+4*tile+3}]'
                k(f'v_mfma_f32_16x16x32_bf16 v[{S+4*tile}:{S+4*tile+3}], v[{CB+4*t}:{CB+4*t+3}], v[{Q+4*t}:{Q+4*t+3}], {c}')
                if t + nah < 16:
                    k(f'ds_read_b128 v[{CB+4*(t+nah)}:{CB+4*(t+nah)+3}], v6 offset:{64*(t+nah) + tile*16*RS}')
        k(f'v_max3_f32 v4, v{S}, v{S+1}, v{S+2}')
        k(f'v_max_f32 v4, v4, v{S+3}')
        k(f's_mov_b32 s54, {f32(CS)}')
        k(f'v_max3_f32 v4, v4, v{S+4}, v{S+5}')
        k(f'v_max3_f32 v4, v4, v{S+6}, v{S+7}')
        k(f'ds_max_f32 v8, v4 offset:{MX}')
        k('s_waitcnt lgkmcnt(0)')
        self.stamp(5)
        k('s_barrier')
        k(f'ds_read_b32 v4, v8 offset:{MX}')
        for i in range(12): self.trread(i, 1)
        k('s_waitcnt lgkmcnt(12)')
        k('v_mul_f32 v4, s54, v4')
        for e in range(8):
            k(f'v_fma_f32 v{S+e}, v{S+e}, s54, -v4')
        for e in range(8):
            k(f'v_exp_f32 v{S+e}, v{S+e}')
        for e in range(4):
            k(f'v_cvt_pk_bf16_f32 v{S+e}, v{S+2*e}, v{S+2*e+1}')
        k('s_waitcnt lgkmcnt(8)')
        k(f'ds_write_b128 v12, v[{S}:{S+3}] offset:{PL}')
        for i in range(12, 16): self.trread(i, 1)
        k('s_waitcnt lgkmcnt(4)')
        k('s_branch L_bar3')

    def f2act(self, issue):
        k = self.k
        G = 80
        k(f's_lshl_b32 s52, s{sH}, 13')
        k(f's_add_u32 s52, s52, {XF}')
        k('s_add_u32 s53, s52, 4096')
        if issue:
            for p in range(8):
                k(f'buffer_load_dwordx4 v[{G+4*p}:{G+4*p+3}], v2, {WSR}, s{52+(p>>2)} offen offset:{(p&3)*1024} sc1')
            return
        k('s_sub_u32 s54, s3, 5')
        k('s_lshl_b32 s55, s54, 9')
        k(f's_add_u32 s57, s55, {ACT}')
        k('v_and_b32 v6, 31, v1')
        k('v_lshlrev_b32 v6, 4, v6')
        k('v_lshrrev_b32 v5, 5, v1')
        k('v_lshl_add_u32 v6, v5, 3, v6')
        k('v_add_u32 v6, s57, v6')
        self.gather8(G, issued=20)
        for r in range(4): self.rbf(G + r)
        for r in range(4):
            k(f'v_mul_f32 v{G+4+r}, v{G+r}, v{G+r}')
        k(f's_mov_b32 s54, {f32(0.044715)}')
        for r in range(4):
            k(f'v_fma_f32 v{G+4+r}, v{G+4+r}, s54, 1.0')
        for r in range(4):
            k(f'v_mul_f32 v{G+4+r}, v{G+4+r}, v{G+r}')
        for r in range(4):
            k(f'v_mul_f32 v{G+4+r}, {f32(-2*math.sqrt(2/math.pi)*LOG2E)}, v{G+4+r}')
        for r in range(4):
            k(f'v_exp_f32 v{G+4+r}, v{G+4+r}')
        for r in range(4):
            k(f'v_add_f32 v{G+4+r}, 1.0, v{G+4+r}')
        for r in range(4):
            k(f'v_rcp_f32 v{G+4+r}, v{G+4+r}')
        for r in range(4):
            k(f'v_mul_f32 v{G+4+r}, v{G+4+r}, v{G+r}')
        for r in range(4): self.rbf(G + 4 + r)
        for r in range(4):
            k(f'v_mul_f32_dpp v{G+4+r}, v{G+r}, v{G+4+r} row_ror:8 {DPP}')
        k(f'v_cvt_pk_bf16_f32 v{G}, v{G+4}, v{G+5}')
        k(f'v_cvt_pk_bf16_f32 v{G+1}, v{G+6}, v{G+7}')
        k(f'ds_write_b64 v6, v[{G}:{G+1}]')
        self.stamp(14)

    def load64(self, W, rowoff, n0=0, n1=16):
        k = self.k
        for n in range(n0, n1):
            k(f's_add_u32 s53, s58, {rowoff(n)}')
            k(f'buffer_load_dwordx4 v[{W+4*n}:{W+4*n+3}], v11, {GEN}, s53 offen {self.nt}')

    def body(self):
        k = self.k
        W, B, D, A = 16, 80, 144, 176
        k('s_cmp_eq_u32 s3, 4')
        k('s_cbranch_scc0 L_not4')
        self.stamp(1)
        self.nonce()
        k(f's_mov_b32 s58, {X1}')
        k.label('L_phA')
        self.phaseA()
        k('s_branch L_gq')
        k.label('L_not4')
        k('s_cmp_lt_u32 s3, 4')
        k('s_cbranch_scc1 L_tw')
        k('s_cmp_eq_u32 s3, 5')
        k('s_cbranch_scc1 L_w5')
        k('s_cmp_eq_u32 s3, 6')
        k('s_cbranch_scc1 L_w6')
        self.layernorm()
        self.nonce()
        self.f1addr()
        k(f's_cmp_ge_u32 s{sH}, 27')
        k('s_cbranch_scc1 L_gq')
        self.ldswait(F_A if self.ftrig == -3 else F_F1, 1, first=True)
        self.f1loads()
        self.stamp(1)
        k(f's_mov_b32 s58, {XF}')
        k('s_branch L_phA')
        k.label('L_w6')
        self.nonce()
        k('s_branch L_gq')
        k.label('L_w5')
        if self.hprio: k(f's_setprio {self.hprio}')
        self.phaseB()
        k.label('L_gq')
        if self.hprio: k(f's_setprio {self.hprio}')
        k('s_cmp_eq_u32 s3, 4')
        k('s_cbranch_scc0 L_t56')
        k.srd(SGEN, PTR['wuv'], SIZES['wuv'])
        k('v_lshrrev_b32 v4, 4, v1')
        k('v_lshlrev_b32 v4, 15, v4')
        k('v_and_b32 v5, 15, v1')
        k('v_lshl_add_u32 v11, v5, 4, v4')
        k(f's_lshl_b32 s52, s{sJ}, 19')
        k(f's_lshl_b32 s53, s{sH}, 8')
        k('s_add_u32 s58, s52, s53')
        uvrow = lambda n: (16 * (n & 3) + (n >> 2)) * 8192
        k('s_branch L_gq2')
        k.label('L_t56')
        k('s_sub_u32 s54, s3, 5')
        k(f's_lshl_b32 s52, s{sH}, 1')
        k('s_add_u32 s52, s52, s54')
        k(f's_mov_b32 s55, s{sJ}')
        k.srd(SGEN, PTR['wo'], SIZES['wo'])
        k(f's_cmp_lt_u32 s{sJ}, 5')
        k('s_cbranch_scc1 L_tld')
        k(f's_mov_b32 s52, s{sH}')
        k(f's_sub_u32 s55, s{sJ}, 5')
        k('s_lshl_b32 s55, s55, 1')
        k('s_add_u32 s55, s55, s54')
        k.srd(SGEN, PTR['wd'], SIZES['wd'])
        k('s_cmp_lt_u32 s55, 5')
        k('s_cselect_b32 s52, s52, 64')
        k.label('L_tld')
        k('s_mov_b32 s37, s52')
        k('s_mov_b32 s38, s55')
        k(f's_mul_i32 s52, s52, {64*1280}')
        k('s_lshl_b32 s53, s55, 8')
        k('s_add_u32 s58, s52, s53')
        k('v_lshrrev_b32 v4, 4, v1')
        k(f'v_mul_u32_u24 v4, {16*1280}, v4')
        k('v_and_b32 v5, 15, v1')
        k('v_lshl_add_u32 v11, v5, 4, v4')
        k.label('L_gq2')
        self.pvaddr()
        self.gatherQ()
        k('s_setprio 0')
        k('s_barrier')
        self.stamp(9)
        k('s_cmp_eq_u32 s3, 7')
        k('s_cbranch_scc1 L_hb2')
        k('s_cmp_eq_u32 s3, 4')
        k('s_cbranch_scc0 L_hb1')
        k(f's_lshl_b32 s52, s{sHJ}, 10')
        k(f's_add_u32 s53, s52, {X4}')
        k(f'buffer_load_dwordx4 v[{B}:{B+3}], v2, {WSR}, s53 offen sc1')
        self.load64(W, uvrow)
        k('s_branch L_hb2')
        k.label('L_hb1')
        self.iff2(lambda: self.f2act(True))
        self.load64(W, lambda n: n * 1280, 0, self.wo1)
        k.label('L_hb2')
        for i in range(16):
            if i == 12: k('s_waitcnt lgkmcnt(8)')
            self.trread(i, 0)
        k('v_and_b32 v4, 15, v1')
        k('v_lshlrev_b32 v6, 2, v4')
        k('s_waitcnt lgkmcnt(0)')
        k('s_barrier')
        self.if56(lambda: self.load64(W, lambda n: n * 1280, self.wo1, self.wo1 + self.wo2))
        k(f'ds_read_b32 v8, v6 offset:{MX}')
        for i in range(16):
            if i == 12: k('s_waitcnt lgkmcnt(8)')
            self.trread(i, 1)
        k('s_waitcnt lgkmcnt(8)')
        k.label('L_bar3')
        k('s_barrier')
        self.stamp(6)
        self.pv()
        self.stamp(7)
        def stats():
            for i in range(4): k(f'v_mov_b32 v{20+i}, 0x3f803f80')
            k(f'v_mul_f32 v16, {f32(CS)}, v8')
            k(f'v_mov_b32 v17, s{sN}')
            for kb in range(4):
                c = '0' if kb == 0 else 'v[24:27]'
                k(f'v_mfma_f32_16x16x32_bf16 v[24:27], v[20:23], v[{self.PF+4*kb}:{self.PF+3+4*kb}], {c}')
            k(f'v_mov_b32 v19, s{sN}')
            k('v_and_b32 v4, 7, v1')
            k('v_lshlrev_b32 v4, 5, v4')
            k('v_bfe_u32 v5, v1, 3, 1')
            k('v_lshl_add_u32 v4, v5, 4, v4')
            k(f's_lshl_b32 s52, s{sP}, 1')
            k(f's_add_u32 s52, s52, s{sG2}')
            k('s_lshl_b32 s52, s52, 8')
            k(f's_add_u32 s52, s52, {X3S}')
            k('v_mov_b32 v18, v24')
            k('s_mov_b64 exec, 0xffff')
            k(f'buffer_store_dwordx4 v[16:19], v4, {WSR}, s52 offen sc1')
            k('s_mov_b64 exec, -1')
        self.ifwave(7, stats)
        def late56():
            self.load64(W, lambda n: n * 1280, self.wo1 + self.wo2, 16)
            self.iff2(lambda: self.f2act(False))
        self.if56(late56)
        self.x3addr()
        k('s_waitcnt vmcnt(0)')
        k('s_barrier')
        self.stamp(10)
        def perms():
            lab = k.newlabel('Lb')
            k('s_sub_u32 s52, s3, 4')
            k('s_cmp_lt_u32 s52, 3')
            k(f's_cbranch_scc0 {lab}')
            self.perm8(W, B)
            self.perm8(W + 32, B + 32)
            k.label(lab)
        self.x3(perms)
        self.stamp(12)
        k('s_barrier')
        k('s_cmp_lt_u32 s3, 4')
        k('s_cbranch_scc1 L_endE')
        k('s_cmp_eq_u32 s3, 7')
        k('s_cbranch_scc1 L_fin')
        k('s_cmp_eq_u32 s3, 4')
        k('s_cbranch_scc0 L_e')
        k('v_and_b32 v4, 7, v1')
        k('v_mul_u32_u24 v4, 144, v4')
        k('v_lshrrev_b32 v5, 4, v1')
        k('v_lshl_add_u32 v5, v5, 5, v4')
        k(f'ds_read_b64 v[8:9], v4 offset:{OH+128}')
        k(f'ds_read_b128 v[{A}:{A+3}], v5 offset:{OH}')
        k(f'ds_read_b128 v[{A+4}:{A+7}], v5 offset:{OH+16}')
        k(f's_lshl_b32 s53, s{sHJ}, 10')
        k(f's_add_u32 s53, s53, {X4}')
        k('v_and_b32 v6, 7, v1')
        k('v_lshlrev_b32 v6, 4, v6')
        k('v_bfe_u32 v7, v1, 3, 1')
        k('v_lshl_add_u32 v6, v7, 9, v6')
        k('v_lshrrev_b32 v7, 4, v1')
        k('v_lshl_add_u32 v6, v7, 7, v6')
        self.mfma64(B, A, D)
        k(f'v_max_f32_dpp v10, v8, v8 quad_perm:[1,0,3,2] {DPP}')
        k(f'v_max_f32_dpp v10, v10, v10 quad_perm:[2,3,0,1] {DPP}')
        k('v_sub_f32 v8, v8, v10')
        k('v_exp_f32 v8, v8')
        k('v_mul_f32 v9, v8, v9')
        k(f'v_add_f32_dpp v9, v9, v9 quad_perm:[1,0,3,2] {DPP}')
        k(f'v_add_f32_dpp v9, v9, v9 quad_perm:[2,3,0,1] {DPP}')
        k('v_rcp_f32 v9, v9')
        k('v_mul_f32 v8, v8, v9')
        Wt = 184
        for r in range(4):
            k(f'v_mov_b32_dpp v{Wt+r}, v8 row_newbcast:{r} row_mask:0x5 bank_mask:0xf')
        for r in range(4):
            k(f'v_mov_b32_dpp v{Wt+r}, v8 row_newbcast:{4+r} row_mask:0xa bank_mask:0xf')
        for t in range(8):
            k(f'v_pk_mul_f32 v[{D+4*t}:{D+4*t+1}], v[{D+4*t}:{D+4*t+1}], v[{Wt}:{Wt+1}]')
        for t in range(8):
            k(f'v_pk_fma_f32 v[{D+4*t}:{D+4*t+1}], v[{D+4*t+2}:{D+4*t+3}], v[{Wt+2}:{Wt+3}], v[{D+4*t}:{D+4*t+1}]')
        for t in range(8):
            k(f'v_add_f32 v{D+4*t}, v{D+4*t}, v{D+4*t+1}')
        self.pubprep(D)
        self.pubstore(6, 53, '')
        self.stamp(13)
        k(f's_add_u32 s53, s53, {DUAL}')
        self.ldswait(F_S4, 2)
        self.pubstore(6, 53, 'sc1')
        self.end()
        k.label('L_e')
        G = 192
        k('s_sub_u32 s54, s3, 5')
        k('s_lshl_b32 s55, s54, 9')
        k(f's_add_u32 s57, s55, {ACT}')
        k('v_bfe_u32 v4, v1, 2, 1')
        k('v_lshlrev_b32 v4, 8, v4')
        k('v_lshrrev_b32 v5, 4, v1')
        k('v_lshl_add_u32 v4, v5, 5, v4')
        k('v_add_u32 v10, s57, v4')
        k(f's_lshl_b32 s59, s{sH}, 13')
        k(f's_cmp_lt_u32 s{sJ}, 5')
        k('s_cbranch_scc1 L_e1')
        k('s_cmp_ge_u32 s37, 27')
        k('s_cbranch_scc1 L_endE2')
        k('s_lshl_b32 s56, s38, 5')
        k('s_add_u32 s56, s56, s37')
        k('s_lshl_b32 s56, s56, 10')
        k(f's_add_u32 s56, s56, {X5Y}')
        k('s_branch L_e2')
        k.label('L_e1')
        k(f's_add_u32 s59, s59, {X4}')
        k('s_add_u32 s59, s59, s55')
        k('v_and_b32 v5, 31, v1')
        k('v_lshlrev_b32 v5, 4, v5')
        k('v_lshrrev_b32 v6, 5, v1')
        k('v_lshl_add_u32 v5, v6, 10, v5')
        k('v_and_b32 v7, 7, v1')
        k('v_lshlrev_b32 v7, 4, v7')
        k('v_lshl_add_u32 v7, v6, 2, v7')
        k('v_bfe_u32 v6, v1, 3, 1')
        k('v_lshl_add_u32 v7, v6, 8, v7')
        k('v_bfe_u32 v6, v1, 4, 1')
        k('v_lshl_add_u32 v7, v6, 3, v7')
        k('v_add_u32 v7, s57, v7')
        k('s_lshl_b32 s54, s38, 6')
        k('s_add_u32 s54, s54, s37')
        k('s_lshl_b32 s54, s54, 10')
        k(f's_add_u32 s56, s54, {X5S}')
        self.mpoll(4, lambda q: k(f'buffer_load_dwordx4 v[{G+4*q}:{G+4*q+3}], v5, {WSR}, s{52+(q>>1)} offen offset:{(q&1)*2048} sc1'),
                   self.untag(G, 4), pre=self.dualsel(59, self.k4, F_S4))
        self.stamp(13)
        self.treeadd(G, 16)
        for e in range(2):
            k(f'v_permlane32_swap_b32 v{G+e}, v{G+2+e}')
        k(f'v_pk_add_f32 v[{G}:{G+1}], v[{G}:{G+1}], v[{G+2}:{G+3}]')
        k(f'v_cvt_pk_bf16_f32 v{G}, v{G}, v{G+1}')
        k(f'ds_write_b32 v7, v{G}')
        k.label('L_e2')
        k(f'ds_read_b128 v[{A}:{A+3}], v10')
        k(f'ds_read_b128 v[{A+4}:{A+7}], v10 offset:16')
        self.mfma64(B, A, D)
        self.pubprep(D)
        self.pubstore(2, 56, 'sc1')
        self.stamp(14)
        if self.fack: k('s_waitcnt vmcnt(0)')
        k.label('L_endE2')
        self.ldsinc(F_S4)
        k.label('L_endE')
        self.end()
        k.label('L_fin')
        k(f's_lshl_b32 s52, s{sJ}, 5')
        k(f's_add_u32 s37, s52, s{sH}')
        k('s_cmp_ge_u32 s37, 80')
        k('s_cbranch_scc1 L_endF')
        k('s_lshr_b32 s38, s37, 4')
        k('s_and_b32 s39, s37, 15')
        k('s_bfe_u32 s52, s39, 0x10002')
        k('s_mul_i32 s52, s52, 640')
        k('s_lshl_b32 s53, s38, 7')
        k('s_add_u32 s52, s52, s53')
        k('s_and_b32 s53, s39, 3')
        k('s_lshl_b32 s53, s53, 5')
        k('s_add_u32 s52, s52, s53')
        k('s_lshr_b32 s53, s39, 3')
        k('s_lshl_b32 s53, s53, 2')
        k('s_add_u32 s52, s52, s53')
        k('v_and_b32 v4, 3, v1')
        k('v_lshrrev_b32 v5, 4, v1')
        k('v_lshl_add_u32 v10, v4, 3, v5')
        k('v_add_lshl_u32 v10, v10, s52, 1')
        k(f'buffer_load_ushort v11, v10, s[{SX}:{SX+3}], 0 offen')
        k('v_lshrrev_b32 v5, 2, v1')
        k('v_lshlrev_b32 v5, 10, v5')
        k('v_lshl_add_u32 v5, v4, 4, v5')
        k('s_lshl_b32 s58, s39, 6')
        k('s_lshl_b32 s56, s38, 15')
        k('s_add_u32 s56, s56, s58')
        k(f's_add_u32 s56, s56, {X5Y}')
        k('s_add_u32 s57, s56, 16384')
        k('s_lshl_b32 s52, s38, 16')
        k('s_add_u32 s52, s52, s58')
        k(f's_add_u32 s52, s52, {X5S}')
        k('s_add_u32 s53, s52, 16384')
        k('s_add_u32 s54, s53, 16384')
        k('s_add_u32 s55, s54, 16384')
        k.srd(SGEN, PTR['out'], SIZES['out'])
        Z, Y = 16, 32
        k('v_mov_b32 v9, v5')
        k('s_mov_b32 s59, s52')
        self.ldswait(F_S4, 2, first=True)
        k('s_mov_b32 s52, s59')
        self.stamp(13)
        def ldz(p):
            if p == 4:
                for i in range(4): k(f'v_mov_b32 v{Y+4+i}, v3')
            k(f'buffer_load_dwordx4 v[{Z+4*p}:{Z+4*p+3}], v9, {WSR}, s{52+p} offen sc1')
        self.mpoll(6, ldz, self.untag(Z, 6), mask=lambda p: 0xfff if p == 5 else None)
        self.stamp(14)
        self.treeadd(Y, 8)
        self.treeadd(Z, 16)
        for R_ in (Y, Z):
            for e in range(2):
                k(f'v_permlane32_swap_b32 v{R_+e}, v{R_+2+e}')
        for R_ in (Y, Z):
            k(f'v_pk_add_f32 v[{R_}:{R_+1}], v[{R_}:{R_+1}], v[{R_+2}:{R_+3}]')
        for R_ in (Y, Z):
            k(f'v_permlane16_swap_b32 v{R_}, v{R_+1}')
        for R_ in (Y, Z):
            k(f'v_add_f32 v{R_}, v{R_}, v{R_+1}')
        for ror in (8, 4):
            for R_ in (Y, Z):
                k(f'v_add_f32_dpp v{R_}, v{R_}, v{R_} row_ror:{ror} {DPP}')
        self.rbf(Y)
        k(f'v_mul_f32 v{Y+1}, {f32(-LOG2E)}, v{Y}')
        k(f'v_exp_f32 v{Y+1}, v{Y+1}')
        self.rbf(Z)
        k(f'v_add_f32 v{Y+1}, 1.0, v{Y+1}')
        k(f'v_rcp_f32 v{Y+1}, v{Y+1}')
        k('v_lshlrev_b32 v11, 16, v11')
        k(f'v_mul_f32 v{Y}, v{Y}, v{Y+1}')
        self.rbf(Y)
        k(f'v_mul_f32 v{Z}, v{Z}, v{Y}')
        self.rbf(Z)
        k(f'v_add_f32 v{Z}, v{Z}, v11')
        k(f'v_cvt_pk_bf16_f32 v{Z}, v{Z}, v{Z}')
        k('s_mov_b32 exec_lo, 0x000f000f')
        k('s_mov_b32 exec_hi, 0x000f000f')
        k(f'buffer_store_short v{Z}, v10, {GEN}, 0 offen')
        k('s_cmp_eq_u32 s37, 0')
        k('s_cbranch_scc0 L_endF')
        k('s_mov_b64 exec, 1')
        k(f'v_mov_b32 v4, s{sN}')
        k(f'v_mov_b32 v5, {EPOCH}')
        k(f'buffer_store_dword v4, v5, {WSR}, 0 offen sc1')
        k.label('L_endF')
        self.end()

    def build(self):
        k = self.k
        k.label('L_codestart')
        self.prologue()
        self.body()
        k.label('L_tw')
        self.twave()
        if self.stamps: self.stampout()
        k.label('L_exit')
        k('s_endpgm')
        k.label('L_codeend')
        k.lines = fix_hazards(k.lines)
        return module([k], [(KNAME, 256, 512, LDS_BYTES)])

if __name__ == '__main__':
    out = sys.argv[1]
    kw = {}
    for a_ in sys.argv[2:]:
        n, val = a_.split('=')
        kw[n] = int(val) if val.lstrip('-').isdigit() else val
    open(out, 'w').write(Gen(**kw).build())
```
